```python
import torch

def _softmax(x, axis=-1):
    return torch.softmax(x, dim=axis)
def _gelu(x):
    return torch.nn.functional.gelu(x, approximate="tanh")
def _silu(x):
    return torch.nn.functional.silu(x)
def _sigmoid(x):
    return torch.sigmoid(x)
def _layernorm(x, axis=-1, eps=1e-5):
    m = x.mean(dim=axis, keepdim=True)
    v = x.var(dim=axis, keepdim=True, unbiased=False)
    return (x - m) / torch.sqrt(v + eps)
def _scatter_add(tgt, idx, src, axis=0):
    return tgt.clone().index_add_(axis, idx, src)
def _segment_sum(src, seg, n):
    out = torch.zeros((n,) + src.shape[1:], dtype=src.dtype)
    return out.index_add_(0, seg, src)
def _pad(x, pw):
    flat = tuple(v for pair in reversed(pw) for v in pair)
    return torch.nn.functional.pad(x, flat)

kernel_name = 'gated_mix__ssm_conv_s5__dense_activation_relu__prompt'

def setup_inputs():

    _w = (lambda a: (lambda t: t.to(torch.bfloat16) if t.is_floating_point() else t)(torch.as_tensor(a)))
    def _A_setup():
        B, S, D = 1, 2048, 640
        P = D
        Lambda_re = -0.5 * (lambda _x: torch.exp(torch.as_tensor(_x)))((lambda *s: torch.randn(*s, dtype=torch.bfloat16) * 0.8)(P))
        Lambda_im = (lambda *s: torch.randn(*s, dtype=torch.bfloat16) * 0.8)(P) * 1.0
        B_re = (lambda *s: torch.randn(*s, dtype=torch.bfloat16) * 0.8)(P, D) * (D ** -0.5)
        B_im = (lambda *s: torch.randn(*s, dtype=torch.bfloat16) * 0.8)(P, D) * (D ** -0.5)
        C_re = (lambda *s: torch.randn(*s, dtype=torch.bfloat16) * 0.8)(D, P) * (P ** -0.5)
        C_im = (lambda *s: torch.randn(*s, dtype=torch.bfloat16) * 0.8)(D, P) * (P ** -0.5)
        log_dt = (lambda *s: torch.randn(*s, dtype=torch.bfloat16) * 0.8)(P) * 0.3 - 2.0
        Dskip = (lambda *s: torch.randn(*s, dtype=torch.bfloat16) * 0.8)(D)
        return {
            "x": _w((lambda *s: torch.randn(*s, dtype=torch.bfloat16) * 0.05)(B, S, D)),
            "Lambda_re": _w(Lambda_re),
            "Lambda_im": _w(Lambda_im),
            "B_re": _w(B_re),
            "B_im": _w(B_im),
            "C_re": _w(C_re),
            "C_im": _w(C_im),
            "log_dt": _w(log_dt),
            "Dskip": _w(Dskip),
        }
    _A_in = _A_setup()

    def _B_setup():
        B, S, D, Dff = 1, 2048, 640, 1728
        return {
            "x": _w((lambda *s: torch.randn(*s, dtype=torch.bfloat16) * 0.05)(B, S, D)),
            "w1": _w((lambda *s: torch.randn(*s, dtype=torch.bfloat16) * 0.05)(D, Dff)),
            "w2": _w((lambda *s: torch.randn(*s, dtype=torch.bfloat16) * 0.05)(Dff, D)),
        }
    _B_in = _B_setup()

    return {
        "A_x": _A_in["x"],
        "A_Lambda_re": _A_in["Lambda_re"],
        "A_Lambda_im": _A_in["Lambda_im"],
        "A_B_re": _A_in["B_re"],
        "A_B_im": _A_in["B_im"],
        "A_C_re": _A_in["C_re"],
        "A_C_im": _A_in["C_im"],
        "A_log_dt": _A_in["log_dt"],
        "A_Dskip": _A_in["Dskip"],
        "B_x": _B_in["x"],
        "B_w1": _B_in["w1"],
        "B_w2": _B_in["w2"],
        "gate_w": _w((lambda *s: torch.randn(*s, dtype=torch.bfloat16) * 0.05)(640) * 16.0),
    }

def reference(A_x, A_Lambda_re, A_Lambda_im, A_B_re, A_B_im, A_C_re, A_C_im, A_log_dt, A_Dskip, B_x, B_w1, B_w2, gate_w):
    def _A_ref(x, Lambda_re, Lambda_im, B_re, B_im, C_re, C_im, log_dt, Dskip):
        Bsz, L, H = x.shape
        Lam = Lambda_re + 1j * Lambda_im
        Bmat = B_re + 1j * B_im
        Cmat = C_re + 1j * C_im
        dt = torch.exp(log_dt)
        Lam_bar = torch.exp(dt * Lam)
        B_bar = ((Lam_bar - 1.0) / Lam)[:, None] * Bmat
        Bu = torch.einsum("bld,pd->blp", x + 0j, B_bar)
        h = torch.zeros_like(Bu[:, 0, :])
        hs = []
        for t in range(L):
            h = Lam_bar[None, :] * h + Bu[:, t, :]
            hs.append(h)
        hseq = torch.stack(hs, 1)
        y = 2.0 * torch.einsum("blp,dp->bld", hseq, Cmat).real + x * Dskip[None, None, :]
        return y

    def _B_ref(x, w1, w2):
        h = torch.einsum("bsd,df->bsf", x, w1)
        zero = torch.zeros_like(h)
        h = torch.maximum(h, zero)
        return torch.einsum("bsf,fd->bsd", h, w2)

    x = A_x
    g = _sigmoid((x * gate_w).sum(-1, keepdims=True))
    a = _A_ref(x, A_Lambda_re, A_Lambda_im, A_B_re, A_B_im, A_C_re, A_C_im, A_log_dt, A_Dskip)
    b = _B_ref(x, B_w1, B_w2)
    return g * a + (1 - g) * b
```

```python
import sys

L = 2048; D = 640; P = 640; DFF = 1728
WS_H    = 0x0
WS_HLOC = 0x800000
WS_E    = 0x1400000
WS_HB   = 0x1500000
WS_G    = 0x1A00000
WS_SIZE = 0x1B00000

class Asm:
    def __init__(self):
        self.lines = []
    def __call__(self, s):
        self.lines.append("    " + s)
    def label(self, s):
        self.lines.append(s + ":")
    def raw(self, s):
        self.lines.append(s)
    def text(self):
        return "\n".join(self.lines) + "\n"

A = Asm()
BUFSZ = 38912
BOFF = 18432

def vr(b, n=1):
    return f"v{b}" if n == 1 else f"v[{b}:{b+n-1}]"
def sr(b, n=1):
    return f"s{b}" if n == 1 else f"s[{b}:{b+n-1}]"

def build_srd(dst, ptr, nbytes, add=0):
    if add:
        A(f"s_add_u32 s{dst}, s{ptr}, {add}")
        A(f"s_addc_u32 s{dst+1}, s{ptr+1}, 0")
    else:
        A(f"s_mov_b32 s{dst}, s{ptr}")
        A(f"s_mov_b32 s{dst+1}, s{ptr+1}")
    A(f"s_mov_b32 s{dst+2}, {nbytes}")
    A(f"s_mov_b32 s{dst+3}, 0x00020000")

def lam_params(vch2, srd_lre, srd_lim, srd_ldt, o, tmp):
    t0, t1, t2, t3, t4, t5 = [tmp + i for i in range(6)]
    A(f"buffer_load_ushort v{t0}, v{vch2}, {sr(srd_lre,4)}, 0 offen")
    A(f"buffer_load_ushort v{t1}, v{vch2}, {sr(srd_lim,4)}, 0 offen")
    A(f"buffer_load_ushort v{t2}, v{vch2}, {sr(srd_ldt,4)}, 0 offen")
    A("s_waitcnt vmcnt(0)")
    A(f"v_lshlrev_b32 v{t0}, 16, v{t0}")
    A(f"v_lshlrev_b32 v{t1}, 16, v{t1}")
    A(f"v_lshlrev_b32 v{t2}, 16, v{t2}")
    A(f"v_mul_f32 v{t2}, 0x3fb8aa3b, v{t2}")
    A(f"v_exp_f32 v{t2}, v{t2}")
    A("s_nop 0")
    A(f"v_cvt_pk_bf16_f32 v{t2}, v{t2}, v{t2}")
    A(f"v_lshlrev_b32 v{t2}, 16, v{t2}")
    A(f"v_mul_f32 v{t3}, v{t2}, v{t0}")
    A(f"v_mul_f32 v{t4}, v{t2}, v{t1}")
    A(f"v_mul_f32 v{t3}, 0x3fb8aa3b, v{t3}")
    A(f"v_exp_f32 v{t3}, v{t3}")
    A(f"v_mul_f32 v{t4}, 0.15915494, v{t4}")
    A(f"v_cos_f32 v{t5}, v{t4}")
    A(f"v_sin_f32 v{t4}, v{t4}")
    A("s_nop 0")
    A(f"v_mul_f32 v{o}, v{t3}, v{t5}")
    A(f"v_mul_f32 v{o+1}, v{t3}, v{t4}")
    A(f"v_add_f32 v{t3}, -1.0, v{o}")
    A(f"v_mul_f32 v{t4}, v{t0}, v{t0}")
    A(f"v_fmac_f32 v{t4}, v{t1}, v{t1}")
    A(f"v_rcp_f32 v{t4}, v{t4}")
    A(f"v_mul_f32 v{t5}, v{t3}, v{t0}")
    A(f"v_fmac_f32 v{t5}, v{o+1}, v{t1}")
    A(f"v_mul_f32 v{o+3}, v{o+1}, v{t0}")
    A(f"v_fma_f32 v{o+3}, -v{t3}, v{t1}, v{o+3}")
    A(f"v_mul_f32 v{o+2}, v{t5}, v{t4}")
    A(f"v_mul_f32 v{o+3}, v{o+3}, v{t4}")

def kernel_header(name):
    A.raw(f".globl {name}")
    A.raw(".p2align 8")
    A.raw(f".type {name},@function")
    A.label(name)

def kernel_desc(name, vgpr, sgpr=100):
    vg = (vgpr + 7) // 8 * 8
    return f""".amdhsa_kernel {name}
  .amdhsa_next_free_vgpr {vg}
  .amdhsa_next_free_sgpr {sgpr}
  .amdhsa_accum_offset {vg}
  .amdhsa_group_segment_fixed_size 0
  .amdhsa_kernarg_size 128
  .amdhsa_user_sgpr_count 2
  .amdhsa_user_sgpr_kernarg_segment_ptr 1
  .amdhsa_system_sgpr_workgroup_id_x 1
.end_amdhsa_kernel
"""

def gemm(segs, R, NI, NJ, nA, swapped, accs):
    nk = len(segs)
    def issue_loads(it):
        s = segs[it]
        A(f"s_mov_b32 s90, {s['koffA']}")
        A(f"s_mov_b32 s91, {s['koffB']}")
        for j in range(nA):
            A(f"buffer_load_dwordx4 {vr(R['stA']+4*j,4)}, v{s['voffA']+j}, {sr(s['srdA'],4)}, s90 offen")
        for j in range(4):
            srd = s['srdB'][j] if isinstance(s['srdB'], list) else s['srdB']
            A(f"buffer_load_dwordx4 {vr(R['stB']+4*j,4)}, v{s['voffB']+j}, {sr(srd,4)}, s91 offen")
    def write_lds(it):
        s = segs[it]; buf = (it & 1) * BUFSZ
        for j in range(nA):
            A(f"ds_write_b128 v{R['wA']}, {vr(R['stA']+4*j,4)} offset:{buf + j*4608}")
        for j in range(4):
            if s['tr']:
                A(f"ds_write_b128 v{R['wBt']}, {vr(R['stB']+4*j,4)} offset:{buf + j*5120}")
            else:
                A(f"ds_write_b128 v{R['wB']}, {vr(R['stB']+4*j,4)} offset:{buf + j*4608}")
    def reads(it, kk):
        s = segs[it]; buf = (it & 1) * BUFSZ; fs = kk & 1
        n = 0
        for i in range(NI):
            A(f"ds_read_b128 {vr(R['fA'][fs]+4*i,4)}, v{R['rA']} offset:{buf + i*4608 + kk*32}")
            n += 1
        for j in range(NJ):
            if s['tr']:
                for h in range(2):
                    A(f"ds_read_b64_tr_b16 {vr(R['fB'][fs]+4*j+2*h,2)}, v{R['rBt']} offset:{buf + (kk*16+h*4)*320 + j*64}")
                    n += 1
            else:
                A(f"ds_read_b128 {vr(R['fB'][fs]+4*j,4)}, v{R['rB']} offset:{buf + j*4608 + kk*32}")
                n += 1
        return n
    issue_loads(0)
    A("s_waitcnt vmcnt(0)")
    write_lds(0)
    A("s_waitcnt lgkmcnt(0)")
    A("s_barrier")
    for it in range(nk):
        if it + 1 < nk:
            issue_loads(it + 1)
        n = reads(it, 0)
        for kk in range(4):
            if kk < 3:
                n = reads(it, kk + 1)
                A(f"s_waitcnt lgkmcnt({n})")
            else:
                A("s_waitcnt lgkmcnt(0)")
            fs = kk & 1
            for i in range(NI):
                for j in range(NJ):
                    acc = accs[it][i*NJ + j]
                    fa = vr(R['fA'][fs]+4*i, 4); fb = vr(R['fB'][fs]+4*j, 4)
                    if swapped:
                        A(f"v_mfma_f32_32x32x16_bf16 {vr(acc,16)}, {fb}, {fa}, {vr(acc,16)}")
                    else:
                        A(f"v_mfma_f32_32x32x16_bf16 {vr(acc,16)}, {fa}, {fb}, {vr(acc,16)}")
        if it + 1 < nk:
            A("s_waitcnt vmcnt(0)")
            write_lds(it + 1)
            A("s_waitcnt lgkmcnt(0)")
        A("s_barrier")

def common_addr(R, WM, WN):
    A("v_lshrrev_b32 v1, 3, v0")
    A(f"v_mul_u32_u24 v1, 144, v1")
    A("v_and_b32 v2, 7, v0")
    A(f"v_lshl_add_u32 v{R['wA']}, v2, 4, v1")
    A(f"v_add_u32 v{R['wB']}, {BOFF}, v{R['wA']}")
    A("v_lshrrev_b32 v1, 4, v0")
    A(f"v_mul_u32_u24 v1, 320, v1")
    A("v_and_b32 v2, 15, v0")
    A(f"v_lshl_add_u32 v{R['wBt']}, v2, 4, v1")
    A(f"v_add_u32 v{R['wBt']}, {BOFF}, v{R['wBt']}")
    A("v_and_b32 v1, 31, v0")
    A("v_bfe_u32 v2, v0, 5, 1")
    A("v_lshrrev_b32 v3, 7, v0")
    A(f"v_mul_u32_u24 v3, {WM}, v3")
    A("v_add_u32 v3, v3, v1")
    A("v_mul_u32_u24 v3, 144, v3")
    A(f"v_lshl_add_u32 v{R['rA']}, v2, 4, v3")
    A("v_bfe_u32 v3, v0, 6, 1")
    A(f"v_mul_u32_u24 v3, {WN}, v3")
    A("v_add_u32 v3, v3, v1")
    A("v_mul_u32_u24 v3, 144, v3")
    A(f"v_lshl_add_u32 v3, v2, 4, v3")
    A(f"v_add_u32 v{R['rB']}, {BOFF}, v3")
    A("v_bfe_u32 v1, v0, 2, 2")
    A("v_lshl_add_u32 v1, v2, 3, v1")
    A("v_mul_u32_u24 v1, 320, v1")
    A("v_bfe_u32 v3, v0, 6, 1")
    A(f"v_mul_u32_u24 v3, {WN}, v3")
    A("v_bfe_u32 v2, v0, 4, 1")
    A("v_lshl_add_u32 v3, v2, 4, v3")
    A("v_and_b32 v2, 3, v0")
    A("v_lshl_add_u32 v3, v2, 2, v3")
    A("v_lshl_add_u32 v1, v3, 1, v1")
    A(f"v_add_u32 v{R['rBt']}, {BOFF}, v1")

def gen_k1():
    kernel_header("k1_kernel")
    A("s_cmp_ge_u32 s2, 384")
    A("s_cbranch_scc1 K1_END")
    A("s_load_dwordx2 s[4:5], s[0:1], 0")
    A("s_load_dwordx4 s[24:27], s[0:1], 8")
    A("s_load_dwordx4 s[28:31], s[0:1], 24")
    A("s_load_dwordx2 s[32:33], s[0:1], 56")
    A("s_load_dwordx2 s[34:35], s[0:1], 80")
    A("s_load_dwordx2 s[36:37], s[0:1], 120")
    R = dict(wA=4, wB=5, wBt=6, rA=7, rB=8, rBt=9, voffA=10, voffB=14, stA=20, stB=36, fA=[52, 60], fB=[68, 76])
    ACC = 96
    common_addr(R, 64, 64)
    A("s_waitcnt lgkmcnt(0)")
    build_srd(8, 4, L*D*2)
    A("s_and_b32 s40, s2, 15")
    A("s_lshl_b32 s41, s40, 7")
    A("v_lshrrev_b32 v1, 3, v0")
    A("v_add_u32 v1, s41, v1")
    A("v_mul_u32_u24 v1, 1280, v1")
    A("v_and_b32 v2, 7, v0")
    A(f"v_lshl_add_u32 v{R['voffA']}, v2, 4, v1")
    for j in range(1, 4):
        A(f"v_add_u32 v{R['voffA']+j}, {32*1280*j}, v{R['voffA']}")
    for r in range(64):
        A(f"v_mov_b32 v{ACC+r}, 0")
    A("s_cmp_ge_u32 s2, 160")
    A("s_cbranch_scc1 K1_FFN")
    A("s_lshr_b32 s42, s2, 4")
    A("s_lshl_b32 s43, s42, 6")
    build_srd(12, 28, P*D*2)
    build_srd(16, 30, P*D*2)
    A("v_lshrrev_b32 v1, 3, v0")
    A("v_add_u32 v1, s43, v1")
    A("v_mul_u32_u24 v1, 1280, v1")
    A("v_and_b32 v2, 7, v0")
    A(f"v_lshl_add_u32 v{R['voffB']}, v2, 4, v1")
    A(f"v_mov_b32 v{R['voffB']+1}, v{R['voffB']}")
    A(f"v_add_u32 v{R['voffB']+2}, {32*1280}, v{R['voffB']}")
    A(f"v_mov_b32 v{R['voffB']+3}, v{R['voffB']+2}")
    segs = [dict(srdA=8, koffA=k*128, voffA=R['voffA'], srdB=[12, 16, 12, 16], koffB=k*128, voffB=R['voffB'], tr=False)
            for k in range(10)]
    accs = [[ACC, ACC+16, ACC+32, ACC+48]] * 10
    gemm(segs, R, 2, 2, 4, False, accs)
    build_srd(44, 24, 1280); build_srd(48, 26, 1280); build_srd(52, 32, 1280)
    A("v_and_b32 v1, 31, v0")
    A("v_bfe_u32 v2, v0, 6, 1")
    A("v_lshl_add_u32 v1, v2, 5, v1")
    A("v_add_u32 v2, s43, v1")
    A("v_lshlrev_b32 v2, 1, v2")
    lam_params(2, 44, 48, 52, 20, 24)
    A("v_mul_u32_u24 v3, 528, v1")
    A("v_lshrrev_b32 v2, 7, v0")
    A("v_lshlrev_b32 v2, 8, v2")
    A("v_add_u32 v3, v3, v2")
    A("v_bfe_u32 v2, v0, 5, 1")
    A("v_lshl_add_u32 v3, v2, 4, v3")
    A("s_nop 7"); A("s_nop 7")
    for i in range(2):
        for jj in range(4):
            for r in range(4):
                xr = ACC + (i*2+0)*16 + jj*4 + r; xi = ACC + (i*2+1)*16 + jj*4 + r
                A(f"v_mul_f32 v{28+r}, v22, v{xr}")
                A(f"v_fma_f32 v{28+r}, -v23, v{xi}, v{28+r}")
                A(f"v_mul_f32 v{32+r}, v22, v{xi}")
                A(f"v_fma_f32 v{32+r}, v23, v{xr}, v{32+r}")
            A(f"ds_write_b128 v3, v[28:31] offset:{(i*32+jj*8)*4}")
            A(f"ds_write_b128 v3, v[32:35] offset:{(i*32+jj*8)*4 + 64*528}")
            A("s_nop 1")
    A("s_waitcnt lgkmcnt(0)")
    A("s_barrier")
    A("v_and_b32 v1, 63, v0")
    A("v_add_u32 v2, s43, v1")
    A("v_lshlrev_b32 v2, 1, v2")
    lam_params(2, 44, 48, 52, 20, 24)
    A("v_mul_u32_u24 v3, 528, v1")
    A("v_lshrrev_b32 v2, 6, v0")
    A("v_lshl_add_u32 v3, v2, 7, v3")
    for u in range(8):
        A(f"ds_read_b128 v[{32+4*u}:{35+4*u}], v3 offset:{16*u}")
        A(f"ds_read_b128 v[{64+4*u}:{67+4*u}], v3 offset:{16*u + 64*528}")
    build_srd(56, 36, L*1280*4, WS_HLOC)
    build_srd(60, 36, 64*1280*4, WS_E)
    A("v_readfirstlane_b32 s64, v2")
    A("s_lshl_b32 s65, s40, 2")
    A("s_add_u32 s65, s65, s64")
    A("s_lshl_b32 s66, s65, 5")
    A("s_mul_i32 s67, s66, 5120")
    A("v_add_u32 v4, s43, v1")
    A("v_lshlrev_b32 v4, 2, v4")
    A("v_add_u32 v5, 2560, v4")
    A("v_mov_b32 v6, 0")
    A("v_mov_b32 v7, 0")
    A("s_waitcnt lgkmcnt(0)")
    for t in range(32):
        br = 32 + t; bi = 64 + t
        A(f"v_fma_f32 v8, v20, v6, v{br}")
        A(f"v_fma_f32 v9, v20, v7, v{bi}")
        A(f"v_fma_f32 v8, -v21, v7, v8")
        A(f"v_fma_f32 v7, v21, v6, v9")
        A(f"v_mov_b32 v6, v8")
        A(f"buffer_store_dword v6, v4, s[56:59], s67 offen")
        A(f"buffer_store_dword v7, v5, s[56:59], s67 offen")
        A("s_add_u32 s67, s67, 5120")
    A("s_mul_i32 s67, s65, 5120")
    A(f"buffer_store_dword v6, v4, s[60:63], s67 offen")
    A(f"buffer_store_dword v7, v5, s[60:63], s67 offen")
    A("s_branch K1_END")
    A.label("K1_FFN")
    A("s_sub_u32 s42, s2, 160")
    A("s_lshr_b32 s42, s42, 4")
    A("s_lshl_b32 s43, s42, 7")
    build_srd(12, 34, D*DFF*2)
    A("v_lshrrev_b32 v1, 4, v0")
    A("v_mul_u32_u24 v1, 3456, v1")
    A("v_and_b32 v2, 15, v0")
    A("v_lshl_add_u32 v1, v2, 4, v1")
    A("s_lshl_b32 s44, s43, 1")
    A(f"v_add_u32 v{R['voffB']}, s44, v1")
    for j in range(1, 4):
        A(f"v_add_u32 v{R['voffB']+j}, {16*3456*j}, v{R['voffB']}")
    segs = [dict(srdA=8, koffA=k*128, voffA=R['voffA'], srdB=12, koffB=k*64*3456, voffB=R['voffB'], tr=True)
            for k in range(10)]
    gemm(segs, R, 2, 2, 4, True, accs)
    A("v_bfe_u32 v2, v0, 6, 1")
    A("s_nop 1")
    A("v_readfirstlane_b32 s45, v2")
    A("s_nop 3")
    A("s_lshl_b32 s45, s45, 6")
    A("s_add_u32 s45, s45, s43")
    A("s_cmp_ge_u32 s45, 1728")
    A("s_cbranch_scc1 K1_END")
    build_srd(56, 36, L*DFF*2, WS_H)
    A("v_and_b32 v1, 31, v0")
    A("v_lshrrev_b32 v2, 7, v0")
    A("v_lshl_add_u32 v1, v2, 6, v1")
    A("v_add_u32 v1, s41, v1")
    A("v_mul_u32_u24 v1, 3456, v1")
    A("v_bfe_u32 v2, v0, 5, 1")
    A("v_lshl_add_u32 v1, v2, 3, v1")
    A("s_lshl_b32 s45, s45, 1")
    A("v_add_u32 v1, s45, v1")
    A(f"v_add_u32 v2, {32*3456}, v1")
    A("s_nop 7"); A("s_nop 7")
    for i in range(2):
        for j in range(2):
            for jj in range(4):
                a = ACC + (i*2+j)*16 + jj*4
                for r in range(4):
                    A(f"v_max_f32 v{a+r}, 0, v{a+r}")
                A(f"v_cvt_pk_bf16_f32 v{a}, v{a}, v{a+1}")
                A(f"v_cvt_pk_bf16_f32 v{a+1}, v{a+2}, v{a+3}")
                A(f"buffer_store_dwordx2 v[{a}:{a+1}], v{1+i}, s[56:59], 0 offen offset:{(j*32+jj*8)*2}")
    A.label("K1_END")
    A("s_endpgm")
    return kernel_desc("k1_kernel", 160)

def gen_k2():
    kernel_header("k2_kernel")
    A("s_cmp_ge_u32 s2, 576")
    A("s_cbranch_scc1 K2_END")
    A("s_load_dwordx2 s[4:5], s[0:1], 0")
    A("s_load_dwordx4 s[24:27], s[0:1], 8")
    A("s_load_dwordx2 s[32:33], s[0:1], 56")
    A("s_load_dwordx2 s[34:35], s[0:1], 96")
    A("s_load_dwordx2 s[36:37], s[0:1], 120")
    A("s_waitcnt lgkmcnt(0)")
    A("s_cmp_ge_u32 s2, 320")
    A("s_cbranch_scc1 K2_GATE")
    build_srd(44, 24, 1280); build_srd(48, 26, 1280); build_srd(52, 32, 1280)
    build_srd(56, 36, L*1280*4, WS_HLOC)
    build_srd(60, 36, 64*1280*4, WS_E)
    build_srd(64, 36, L*1280*2, WS_HB)
    A("s_mul_hi_u32 s40, s2, 0x33333334")
    A("s_mul_i32 s41, s40, 5")
    A("s_sub_u32 s41, s2, s41")
    A("s_lshl_b32 s41, s41, 7")
    A("v_lshl_add_u32 v1, v0, 1, s41")
    A("v_lshlrev_b32 v2, 1, v1")
    lam_params(2, 44, 48, 52, 10, 20)
    A("v_add_u32 v2, 2, v2")
    lam_params(2, 44, 48, 52, 14, 20)
    A("v_mov_b32 v16, v10"); A("v_mov_b32 v17, v11"); A("v_mov_b32 v18, v14"); A("v_mov_b32 v19, v15")
    for _ in range(5):
        for b in (16, 18):
            A(f"v_mul_f32 v20, v{b+1}, v{b+1}")
            A(f"v_mul_f32 v21, v{b}, v{b+1}")
            A(f"v_fma_f32 v{b}, v{b}, v{b}, -v20")
            A(f"v_add_f32 v{b+1}, v21, v21")
    for r in range(24, 28):
        A(f"v_mov_b32 v{r}, 0")
    A("v_lshlrev_b32 v3, 2, v1")
    A("v_add_u32 v4, 2560, v3")
    A("s_mov_b32 s42, 0")
    A("s_mov_b32 s43, 0")
    A.label("K2_CARRY")
    A("s_cmp_ge_u32 s42, s40")
    A("s_cbranch_scc1 K2_APPLY")
    A("buffer_load_dwordx2 v[28:29], v3, s[60:63], s43 offen")
    A("buffer_load_dwordx2 v[30:31], v4, s[60:63], s43 offen")
    A("s_waitcnt vmcnt(0)")
    for (sre, sim, lr, e) in ((24, 26, 16, 28), (25, 27, 18, 29)):
        A(f"v_fma_f32 v20, v{lr}, v{sre}, v{e}")
        A(f"v_fma_f32 v21, v{lr}, v{sim}, v{e+2}")
        A(f"v_fma_f32 v20, -v{lr+1}, v{sim}, v20")
        A(f"v_fma_f32 v{sim}, v{lr+1}, v{sre}, v21")
        A(f"v_mov_b32 v{sre}, v20")
    A("s_add_u32 s42, s42, 1")
    A("s_add_u32 s43, s43, 5120")
    A("s_branch K2_CARRY")
    A.label("K2_APPLY")
    A("s_mul_i32 s43, s40, 163840")
    A("s_mul_i32 s44, s40, 81920")
    A("v_lshlrev_b32 v5, 1, v1")
    A("v_add_u32 v6, 1280, v5")
    for half in range(2):
        for t in range(16):
            A(f"buffer_load_dwordx2 v[{32+4*t}:{33+4*t}], v3, s[56:59], s43 offen")
            A(f"buffer_load_dwordx2 v[{34+4*t}:{35+4*t}], v4, s[56:59], s43 offen")
            A("s_add_u32 s43, s43, 5120")
        for t in range(16):
            A(f"s_waitcnt vmcnt({30-2*t})")
            for (sre, sim, lr) in ((24, 26, 10), (25, 27, 14)):
                A(f"v_mul_f32 v20, v{lr+1}, v{sim}")
                A(f"v_mul_f32 v21, v{lr+1}, v{sre}")
                A(f"v_fma_f32 v{sre}, v{lr}, v{sre}, -v20")
                A(f"v_fma_f32 v{sim}, v{lr}, v{sim}, v21")
            b = 32 + 4*t
            A(f"v_add_f32 v{b}, v{b}, v24")
            A(f"v_add_f32 v{b+1}, v{b+1}, v25")
            A(f"v_add_f32 v{b+2}, v{b+2}, v26")
            A(f"v_add_f32 v{b+3}, v{b+3}, v27")
            A(f"v_cvt_pk_bf16_f32 v{b}, v{b}, v{b+1}")
            A(f"v_cvt_pk_bf16_f32 v{b+1}, -v{b+2}, -v{b+3}")
            A(f"buffer_store_dword v{b}, v5, s[64:67], s44 offen")
            A(f"buffer_store_dword v{b+1}, v6, s[64:67], s44 offen")
            A("s_add_u32 s44, s44, 2560")
    A("s_branch K2_END")
    A.label("K2_GATE")
    build_srd(8, 4, L*D*2)
    build_srd(12, 34, 1280)
    build_srd(16, 36, L*4, WS_G)
    A("s_sub_u32 s40, s2, 320")
    A("s_lshl_b32 s40, s40, 3")
    A("v_lshlrev_b32 v1, 2, v0")
    for j in range(5):
        A(f"buffer_load_dword v{10+j}, v1, s[12:15], 0 offen offset:{256*j}")
    A("s_mul_i32 s41, s40, 1280")
    A("s_mov_b32 s42, 0")
    A.label("K2_GROW")
    for j in range(5):
        A(f"buffer_load_dword v{20+j}, v1, s[8:11], s41 offen offset:{256*j}")
    A("s_waitcnt vmcnt(0)")
    A("v_mov_b32 v30, 0")
    for j in range(5):
        A(f"v_lshlrev_b32 v31, 16, v{10+j}")
        A(f"v_lshlrev_b32 v32, 16, v{20+j}")
        A(f"v_and_b32 v33, 0xffff0000, v{10+j}")
        A(f"v_and_b32 v34, 0xffff0000, v{20+j}")
        A("v_mul_f32 v31, v31, v32")
        A("v_mul_f32 v33, v33, v34")
        A("v_cvt_pk_bf16_f32 v31, v31, v33")
        A("v_lshlrev_b32 v32, 16, v31")
        A("v_and_b32 v33, 0xffff0000, v31")
        A("v_add_f32 v30, v30, v32")
        A("v_add_f32 v30, v30, v33")
    for off in (0x041F, 0x081F, 0x101F, 0x201F, 0x401F):
        A(f"ds_swizzle_b32 v31, v30 offset:{off}")
        A("s_waitcnt lgkmcnt(0)")
        A("v_add_f32 v30, v30, v31")
    A("s_nop 1")
    A("v_readlane_b32 s44, v30, 32")
    A("v_readlane_b32 s45, v30, 0")
    A("s_nop 3")
    A("v_mov_b32 v31, s44")
    A("v_add_f32 v31, s45, v31")
    A("v_cvt_pk_bf16_f32 v31, v31, v31")
    A("v_lshlrev_b32 v31, 16, v31")
    A("v_mul_f32 v31, 0xbfb8aa3b, v31")
    A("v_exp_f32 v31, v31")
    A("s_nop 0")
    A("v_add_f32 v31, 1.0, v31")
    A("v_rcp_f32 v31, v31")
    A("s_nop 0")
    A("v_cvt_pk_bf16_f32 v31, v31, v31")
    A("v_lshlrev_b32 v31, 16, v31")
    A("s_add_u32 s46, s40, s42")
    A("s_lshl_b32 s46, s46, 2")
    A("v_mov_b32 v32, 0")
    A("v_cmp_eq_u32 vcc, 0, v0")
    A("s_and_saveexec_b64 s[48:49], vcc")
    A("buffer_store_dword v31, v32, s[16:19], s46 offen")
    A("s_mov_b64 exec, s[48:49]")
    A("s_add_u32 s41, s41, 1280")
    A("s_add_u32 s42, s42, 1")
    A("s_cmp_lt_u32 s42, 8")
    A("s_cbranch_scc1 K2_GROW")
    A.label("K2_END")
    A("s_endpgm")
    return kernel_desc("k2_kernel", 104)

def gen_k3():
    kernel_header("k3_kernel")
    A("s_cmp_ge_u32 s2, 160")
    A("s_cbranch_scc1 K3_END")
    A("s_load_dwordx2 s[4:5], s[0:1], 0")
    A("s_load_dwordx4 s[24:27], s[0:1], 40")
    A("s_load_dwordx2 s[28:29], s[0:1], 64")
    A("s_load_dwordx2 s[30:31], s[0:1], 88")
    A("s_load_dwordx2 s[32:33], s[0:1], 104")
    A("s_load_dwordx2 s[36:37], s[0:1], 120")
    R = dict(wA=4, wB=5, wBt=6, rA=7, rB=8, rBt=9, voffA=10, voffB=14, stA=24, stB=32, fA=[48, 52], fB=[56, 64],
             voffA2=12, voffB2=18)
    ACCY = 72; ACCF = 104
    common_addr(R, 32, 64)
    A("s_waitcnt lgkmcnt(0)")
    A("s_and_b32 s40, s2, 31")
    A("s_lshl_b32 s41, s40, 6")
    A("s_lshr_b32 s42, s2, 5")
    A("s_lshl_b32 s43, s42, 7")
    build_srd(8, 36, L*1280*2, WS_HB)
    build_srd(12, 24, D*P*2)
    build_srd(16, 26, D*P*2)
    build_srd(20, 36, L*DFF*2, WS_H)
    build_srd(44, 30, DFF*D*2)
    A("v_lshrrev_b32 v1, 3, v0")
    A("v_add_u32 v1, s41, v1")
    A("v_and_b32 v2, 7, v0")
    A("v_lshlrev_b32 v2, 4, v2")
    A("v_mul_u32_u24 v3, 2560, v1")
    A(f"v_add_u32 v{R['voffA']}, v2, v3")
    A(f"v_add_u32 v{R['voffA']+1}, {32*2560}, v{R['voffA']}")
    A("v_mul_u32_u24 v3, 3456, v1")
    A(f"v_add_u32 v{R['voffA2']}, v2, v3")
    A(f"v_add_u32 v{R['voffA2']+1}, {32*3456}, v{R['voffA2']}")
    A("v_lshrrev_b32 v1, 3, v0")
    A("v_add_u32 v1, s43, v1")
    A("v_mul_u32_u24 v1, 1280, v1")
    A(f"v_add_u32 v{R['voffB']}, v2, v1")
    for j in range(1, 4):
        A(f"v_add_u32 v{R['voffB']+j}, {32*1280*j}, v{R['voffB']}")
    A("v_lshrrev_b32 v1, 4, v0")
    A("v_mul_u32_u24 v1, 1280, v1")
    A("v_and_b32 v2, 15, v0")
    A("v_lshl_add_u32 v1, v2, 4, v1")
    A("s_lshl_b32 s48, s43, 1")
    A(f"v_add_u32 v{R['voffB2']}, s48, v1")
    for j in range(1, 4):
        A(f"v_add_u32 v{R['voffB2']+j}, {16*1280*j}, v{R['voffB2']}")
    for r in range(64):
        A(f"v_mov_b32 v{ACCY+r}, 0")
    segs = []; accs = []
    for k in range(20):
        segs.append(dict(srdA=8, koffA=k*128, voffA=R['voffA'], srdB=12 if k < 10 else 16, koffB=(k % 10)*128,
                         voffB=R['voffB'], tr=False))
        accs.append([ACCY, ACCY+16])
    for k in range(27):
        segs.append(dict(srdA=20, koffA=k*128, voffA=R['voffA2'], srdB=44, koffB=k*64*1280, voffB=R['voffB2'], tr=True))
        accs.append([ACCF, ACCF+16])
    gemm(segs, R, 1, 2, 2, True, accs)
    build_srd(8, 4, L*D*2)
    build_srd(12, 28, 1280)
    build_srd(16, 36, L*4, WS_G)
    build_srd(20, 32, L*D*4)
    A("v_and_b32 v1, 31, v0")
    A("v_lshrrev_b32 v2, 7, v0")
    A("v_lshl_add_u32 v1, v2, 5, v1")
    A("v_add_u32 v1, s41, v1")
    A("v_lshlrev_b32 v2, 2, v1")
    A("buffer_load_dword v10, v2, s[16:19], 0 offen")
    A("v_bfe_u32 v2, v0, 6, 1")
    A("v_lshlrev_b32 v2, 6, v2")
    A("v_bfe_u32 v3, v0, 5, 1")
    A("v_lshl_add_u32 v2, v3, 2, v2")
    A("v_add_u32 v2, s43, v2")
    A("v_mul_u32_u24 v3, 640, v1")
    A("v_add_u32 v3, v3, v2")
    A("v_lshlrev_b32 v4, 1, v3")
    A("v_lshlrev_b32 v5, 2, v3")
    A("v_lshlrev_b32 v6, 1, v2")
    for j in range(2):
        for jj in range(4):
            q = j*4 + jj
            A(f"buffer_load_dwordx2 v[{12+2*q}:{13+2*q}], v4, s[8:11], 0 offen offset:{(j*32+jj*8)*2}")
            A(f"buffer_load_dwordx2 v[{28+2*q}:{29+2*q}], v6, s[12:15], 0 offen offset:{(j*32+jj*8)*2}")
    A("s_waitcnt vmcnt(0)")
    A("v_sub_f32 v11, 1.0, v10")
    A("v_cvt_pk_bf16_f32 v11, v11, v11")
    A("v_lshlrev_b32 v11, 16, v11")
    for j in range(2):
        for jj in range(4):
            q = j*4 + jj
            ay = ACCY + j*16 + jj*4; af = ACCF + j*16 + jj*4
            for r in range(4):
                xs = 12 + 2*q + (r >> 1); dsk = 28 + 2*q + (r >> 1)
                if r & 1:
                    A(f"v_and_b32 v44, 0xffff0000, v{xs}")
                    A(f"v_and_b32 v45, 0xffff0000, v{dsk}")
                else:
                    A(f"v_lshlrev_b32 v44, 16, v{xs}")
                    A(f"v_lshlrev_b32 v45, 16, v{dsk}")
                A("v_mul_f32 v44, v44, v45")
                A(f"v_cvt_pk_bf16_f32 v44, v44, v{af+r}")
                A("v_lshlrev_b32 v45, 16, v44")
                A("v_and_b32 v44, 0xffff0000, v44")
                A(f"v_fma_f32 v45, 2.0, v{ay+r}, v45")
                A("v_mul_f32 v44, v11, v44")
                A("v_cvt_pk_bf16_f32 v44, v44, v44")
                A("v_lshlrev_b32 v44, 16, v44")
                A(f"v_mul_f32 v45, v10, v45")
                A(f"v_add_f32 v{ay+r}, v45, v44")
            A(f"buffer_store_dwordx4 v[{ay}:{ay+3}], v5, s[20:23], 0 offen offset:{(j*32+jj*8)*4}")
    A.label("K3_END")
    A("s_endpgm")
    return kernel_desc("k3_kernel", 136)

HDR = open('gated_mix__ssm_conv_s5__dense_activation_relu__prompt.s.ref').read().split('; Override launch')[0]
out = HDR
out += "; @launch kernel=k1_kernel grid=(384,1,1) block=(256,1,1) lds=77824\n"
out += "; @launch kernel=k2_kernel grid=(576,1,1) block=(64,1,1) lds=0\n"
out += "; @launch kernel=k3_kernel grid=(160,1,1) block=(256,1,1) lds=77824\n"
out += '.amdgcn_target "amdgcn-amd-amdhsa--gfx950"\n.text\n'
d1 = gen_k1(); d2 = gen_k2(); d3 = gen_k3()
out += A.text()
out += '.section .rodata,"a"\n.p2align 6\n' + d1 + '.p2align 6\n' + d2 + '.p2align 6\n' + d3
open(sys.argv[1] if len(sys.argv) > 1 else 'gated_mix__ssm_conv_s5__dense_activation_relu__prompt.s', 'w').write(out)
```

```python
import sys

L = 2048; D = 640; P = 640; DFF = 1728
WS_H    = 0x0
WS_HLOC = 0x800000
WS_E    = 0x1400000
WS_HB   = 0x1500000
WS_G    = 0x1A00000
WS_SIZE = 0x1B00000

class Asm:
    def __init__(self):
        self.lines = []
    def __call__(self, s):
        self.lines.append("    " + s)
    def label(self, s):
        self.lines.append(s + ":")
    def raw(self, s):
        self.lines.append(s)
    def text(self):
        return "\n".join(self.lines) + "\n"

A = Asm()
BUFSZ = 38912
BOFF = 18432

def vr(b, n=1):
    return f"v{b}" if n == 1 else f"v[{b}:{b+n-1}]"
def sr(b, n=1):
    return f"s{b}" if n == 1 else f"s[{b}:{b+n-1}]"

def build_srd(dst, ptr, nbytes, add=0):
    if add:
        A(f"s_add_u32 s{dst}, s{ptr}, {add}")
        A(f"s_addc_u32 s{dst+1}, s{ptr+1}, 0")
    else:
        A(f"s_mov_b32 s{dst}, s{ptr}")
        A(f"s_mov_b32 s{dst+1}, s{ptr+1}")
    A(f"s_mov_b32 s{dst+2}, {nbytes}")
    A(f"s_mov_b32 s{dst+3}, 0x00020000")

def lam_params(vch2, srd_lre, srd_lim, srd_ldt, o, tmp):
    t0, t1, t2, t3, t4, t5 = [tmp + i for i in range(6)]
    A(f"buffer_load_ushort v{t0}, v{vch2}, {sr(srd_lre,4)}, 0 offen")
    A(f"buffer_load_ushort v{t1}, v{vch2}, {sr(srd_lim,4)}, 0 offen")
    A(f"buffer_load_ushort v{t2}, v{vch2}, {sr(srd_ldt,4)}, 0 offen")
    A("s_waitcnt vmcnt(0)")
    A(f"v_lshlrev_b32 v{t0}, 16, v{t0}")
    A(f"v_lshlrev_b32 v{t1}, 16, v{t1}")
    A(f"v_lshlrev_b32 v{t2}, 16, v{t2}")
    A(f"v_mul_f32 v{t2}, 0x3fb8aa3b, v{t2}")
    A(f"v_exp_f32 v{t2}, v{t2}")
    A("s_nop 0")
    A(f"v_cvt_pk_bf16_f32 v{t2}, v{t2}, v{t2}")
    A(f"v_lshlrev_b32 v{t2}, 16, v{t2}")
    A(f"v_mul_f32 v{t3}, v{t2}, v{t0}")
    A(f"v_mul_f32 v{t4}, v{t2}, v{t1}")
    A(f"v_mul_f32 v{t3}, 0x3fb8aa3b, v{t3}")
    A(f"v_exp_f32 v{t3}, v{t3}")
    A(f"v_mul_f32 v{t4}, 0.15915494, v{t4}")
    A(f"v_cos_f32 v{t5}, v{t4}")
    A(f"v_sin_f32 v{t4}, v{t4}")
    A("s_nop 0")
    A(f"v_mul_f32 v{o}, v{t3}, v{t5}")
    A(f"v_mul_f32 v{o+1}, v{t3}, v{t4}")
    A(f"v_add_f32 v{t3}, -1.0, v{o}")
    A(f"v_mul_f32 v{t4}, v{t0}, v{t0}")
    A(f"v_fmac_f32 v{t4}, v{t1}, v{t1}")
    A(f"v_rcp_f32 v{t4}, v{t4}")
    A(f"v_mul_f32 v{t5}, v{t3}, v{t0}")
    A(f"v_fmac_f32 v{t5}, v{o+1}, v{t1}")
    A(f"v_mul_f32 v{o+3}, v{o+1}, v{t0}")
    A(f"v_fma_f32 v{o+3}, -v{t3}, v{t1}, v{o+3}")
    A(f"v_mul_f32 v{o+2}, v{t5}, v{t4}")
    A(f"v_mul_f32 v{o+3}, v{o+3}, v{t4}")

def kernel_header(name):
    A.raw(f".globl {name}")
    A.raw(".p2align 8")
    A.raw(f".type {name},@function")
    A.label(name)

def kernel_desc(name, vgpr, sgpr=100):
    vg = (vgpr + 7) // 8 * 8
    return f""".amdhsa_kernel {name}
  .amdhsa_next_free_vgpr {vg}
  .amdhsa_next_free_sgpr {sgpr}
  .amdhsa_accum_offset {vg}
  .amdhsa_group_segment_fixed_size 0
  .amdhsa_kernarg_size 128
  .amdhsa_user_sgpr_count 2
  .amdhsa_user_sgpr_kernarg_segment_ptr 1
  .amdhsa_system_sgpr_workgroup_id_x 1
.end_amdhsa_kernel
"""

def gemm(segs, R, NI, NJ, nA, swapped, accs):
    nk = len(segs)
    def issue_loads(it):
        s = segs[it]
        A(f"s_mov_b32 s90, {s['koffA']}")
        A(f"s_mov_b32 s91, {s['koffB']}")
        for j in range(nA):
            A(f"buffer_load_dwordx4 {vr(R['stA']+4*j,4)}, v{s['voffA']+j}, {sr(s['srdA'],4)}, s90 offen")
        for j in range(4):
            srd = s['srdB'][j] if isinstance(s['srdB'], list) else s['srdB']
            A(f"buffer_load_dwordx4 {vr(R['stB']+4*j,4)}, v{s['voffB']+j}, {sr(srd,4)}, s91 offen")
    def write_lds(it):
        s = segs[it]; buf = (it & 1) * BUFSZ
        for j in range(nA):
            A(f"ds_write_b128 v{R['wA']}, {vr(R['stA']+4*j,4)} offset:{buf + j*4608}")
        for j in range(4):
            if s['tr']:
                A(f"ds_write_b128 v{R['wBt']}, {vr(R['stB']+4*j,4)} offset:{buf + j*5120}")
            else:
                A(f"ds_write_b128 v{R['wB']}, {vr(R['stB']+4*j,4)} offset:{buf + j*4608}")
    def reads(it, kk):
        s = segs[it]; buf = (it & 1) * BUFSZ; fs = kk & 1
        n = 0
        for i in range(NI):
            A(f"ds_read_b128 {vr(R['fA'][fs]+4*i,4)}, v{R['rA']} offset:{buf + i*4608 + kk*32}")
            n += 1
        for j in range(NJ):
            if s['tr']:
                for h in range(2):
                    A(f"ds_read_b64_tr_b16 {vr(R['fB'][fs]+4*j+2*h,2)}, v{R['rBt']} offset:{buf + (kk*16+h*4)*320 + j*64}")
                    n += 1
            else:
                A(f"ds_read_b128 {vr(R['fB'][fs]+4*j,4)}, v{R['rB']} offset:{buf + j*4608 + kk*32}")
                n += 1
        return n
    issue_loads(0)
    A("s_waitcnt vmcnt(0)")
    write_lds(0)
    A("s_waitcnt lgkmcnt(0)")
    A("s_barrier")
    for it in range(nk):
        if it + 1 < nk:
            issue_loads(it + 1)
        n = reads(it, 0)
        for kk in range(4):
            if kk < 3:
                n = reads(it, kk + 1)
                A(f"s_waitcnt lgkmcnt({n})")
            else:
                A("s_waitcnt lgkmcnt(0)")
            fs = kk & 1
            for i in range(NI):
                for j in range(NJ):
                    acc = accs[it][i*NJ + j]
                    fa = vr(R['fA'][fs]+4*i, 4); fb = vr(R['fB'][fs]+4*j, 4)
                    if swapped:
                        A(f"v_mfma_f32_32x32x16_bf16 {vr(acc,16)}, {fb}, {fa}, {vr(acc,16)}")
                    else:
                        A(f"v_mfma_f32_32x32x16_bf16 {vr(acc,16)}, {fa}, {fb}, {vr(acc,16)}")
        if it + 1 < nk:
            A("s_waitcnt vmcnt(0)")
            write_lds(it + 1)
            A("s_waitcnt lgkmcnt(0)")
        A("s_barrier")

def common_addr(R, WM, WN):
    A("v_lshrrev_b32 v1, 3, v0")
    A(f"v_mul_u32_u24 v1, 144, v1")
    A("v_and_b32 v2, 7, v0")
    A(f"v_lshl_add_u32 v{R['wA']}, v2, 4, v1")
    A(f"v_add_u32 v{R['wB']}, {BOFF}, v{R['wA']}")
    A("v_lshrrev_b32 v1, 4, v0")
    A(f"v_mul_u32_u24 v1, 320, v1")
    A("v_and_b32 v2, 15, v0")
    A(f"v_lshl_add_u32 v{R['wBt']}, v2, 4, v1")
    A(f"v_add_u32 v{R['wBt']}, {BOFF}, v{R['wBt']}")
    A("v_and_b32 v1, 31, v0")
    A("v_bfe_u32 v2, v0, 5, 1")
    A("v_lshrrev_b32 v3, 7, v0")
    A(f"v_mul_u32_u24 v3, {WM}, v3")
    A("v_add_u32 v3, v3, v1")
    A("v_mul_u32_u24 v3, 144, v3")
    A(f"v_lshl_add_u32 v{R['rA']}, v2, 4, v3")
    A("v_bfe_u32 v3, v0, 6, 1")
    A(f"v_mul_u32_u24 v3, {WN}, v3")
    A("v_add_u32 v3, v3, v1")
    A("v_mul_u32_u24 v3, 144, v3")
    A(f"v_lshl_add_u32 v3, v2, 4, v3")
    A(f"v_add_u32 v{R['rB']}, {BOFF}, v3")
    A("v_bfe_u32 v1, v0, 2, 2")
    A("v_lshl_add_u32 v1, v2, 3, v1")
    A("v_mul_u32_u24 v1, 320, v1")
    A("v_bfe_u32 v3, v0, 6, 1")
    A(f"v_mul_u32_u24 v3, {WN}, v3")
    A("v_bfe_u32 v2, v0, 4, 1")
    A("v_lshl_add_u32 v3, v2, 4, v3")
    A("v_and_b32 v2, 3, v0")
    A("v_lshl_add_u32 v3, v2, 2, v3")
    A("v_lshl_add_u32 v1, v3, 1, v1")
    A(f"v_add_u32 v{R['rBt']}, {BOFF}, v1")

def gen_k1():
    kernel_header("k1_kernel")
    A("s_cmp_ge_u32 s2, 384")
    A("s_cbranch_scc1 K1_END")
    A("s_load_dwordx2 s[4:5], s[0:1], 0")
    A("s_load_dwordx4 s[24:27], s[0:1], 8")
    A("s_load_dwordx4 s[28:31], s[0:1], 24")
    A("s_load_dwordx2 s[32:33], s[0:1], 56")
    A("s_load_dwordx2 s[34:35], s[0:1], 80")
    A("s_load_dwordx2 s[36:37], s[0:1], 120")
    R = dict(wA=4, wB=5, wBt=6, rA=7, rB=8, rBt=9, voffA=10, voffB=14, stA=20, stB=36, fA=[52, 60], fB=[68, 76])
    ACC = 96
    common_addr(R, 64, 64)
    A("s_waitcnt lgkmcnt(0)")
    build_srd(8, 4, L*D*2)
    A("s_and_b32 s40, s2, 15")
    A("s_lshl_b32 s41, s40, 7")
    A("v_lshrrev_b32 v1, 3, v0")
    A("v_add_u32 v1, s41, v1")
    A("v_mul_u32_u24 v1, 1280, v1")
    A("v_and_b32 v2, 7, v0")
    A(f"v_lshl_add_u32 v{R['voffA']}, v2, 4, v1")
    for j in range(1, 4):
        A(f"v_add_u32 v{R['voffA']+j}, {32*1280*j}, v{R['voffA']}")
    for r in range(64):
        A(f"v_mov_b32 v{ACC+r}, 0")
    A("s_cmp_ge_u32 s2, 160")
    A("s_cbranch_scc1 K1_FFN")
    A("s_lshr_b32 s42, s2, 4")
    A("s_lshl_b32 s43, s42, 6")
    build_srd(12, 28, P*D*2)
    build_srd(16, 30, P*D*2)
    A("v_lshrrev_b32 v1, 3, v0")
    A("v_add_u32 v1, s43, v1")
    A("v_mul_u32_u24 v1, 1280, v1")
    A("v_and_b32 v2, 7, v0")
    A(f"v_lshl_add_u32 v{R['voffB']}, v2, 4, v1")
    A(f"v_mov_b32 v{R['voffB']+1}, v{R['voffB']}")
    A(f"v_add_u32 v{R['voffB']+2}, {32*1280}, v{R['voffB']}")
    A(f"v_mov_b32 v{R['voffB']+3}, v{R['voffB']+2}")
    segs = [dict(srdA=8, koffA=k*128, voffA=R['voffA'], srdB=[12, 16, 12, 16], koffB=k*128, voffB=R['voffB'], tr=False)
            for k in range(10)]
    accs = [[ACC, ACC+16, ACC+32, ACC+48]] * 10
    gemm(segs, R, 2, 2, 4, False, accs)
    build_srd(44, 24, 1280); build_srd(48, 26, 1280); build_srd(52, 32, 1280)
    A("v_and_b32 v1, 31, v0")
    A("v_bfe_u32 v2, v0, 6, 1")
    A("v_lshl_add_u32 v1, v2, 5, v1")
    A("v_add_u32 v2, s43, v1")
    A("v_lshlrev_b32 v2, 1, v2")
    lam_params(2, 44, 48, 52, 20, 24)
    A("v_mul_u32_u24 v3, 528, v1")
    A("v_lshrrev_b32 v2, 7, v0")
    A("v_lshlrev_b32 v2, 8, v2")
    A("v_add_u32 v3, v3, v2")
    A("v_bfe_u32 v2, v0, 5, 1")
    A("v_lshl_add_u32 v3, v2, 4, v3")
    A("s_nop 7"); A("s_nop 7")
    for i in range(2):
        for jj in range(4):
            for r in range(4):
                xr = ACC + (i*2+0)*16 + jj*4 + r; xi = ACC + (i*2+1)*16 + jj*4 + r
                A(f"v_mul_f32 v{28+r}, v22, v{xr}")
                A(f"v_fma_f32 v{28+r}, -v23, v{xi}, v{28+r}")
                A(f"v_mul_f32 v{32+r}, v22, v{xi}")
                A(f"v_fma_f32 v{32+r}, v23, v{xr}, v{32+r}")
            A(f"ds_write_b128 v3, v[28:31] offset:{(i*32+jj*8)*4}")
            A(f"ds_write_b128 v3, v[32:35] offset:{(i*32+jj*8)*4 + 64*528}")
            A("s_nop 1")
    A("s_waitcnt lgkmcnt(0)")
    A("s_barrier")
    A("v_and_b32 v1, 63, v0")
    A("v_add_u32 v2, s43, v1")
    A("v_lshlrev_b32 v2, 1, v2")
    lam_params(2, 44, 48, 52, 20, 24)
    A("v_mul_u32_u24 v3, 528, v1")
    A("v_lshrrev_b32 v2, 6, v0")
    A("v_lshl_add_u32 v3, v2, 7, v3")
    for u in range(8):
        A(f"ds_read_b128 v[{32+4*u}:{35+4*u}], v3 offset:{16*u}")
        A(f"ds_read_b128 v[{64+4*u}:{67+4*u}], v3 offset:{16*u + 64*528}")
    build_srd(56, 36, L*1280*4, WS_HLOC)
    build_srd(60, 36, 64*1280*4, WS_E)
    A("v_readfirstlane_b32 s64, v2")
    A("s_lshl_b32 s65, s40, 2")
    A("s_add_u32 s65, s65, s64")
    A("s_lshl_b32 s66, s65, 5")
    A("s_mul_i32 s67, s66, 5120")
    A("v_add_u32 v4, s43, v1")
    A("v_lshlrev_b32 v4, 2, v4")
    A("v_add_u32 v5, 2560, v4")
    A("v_mov_b32 v6, 0")
    A("v_mov_b32 v7, 0")
    A("s_waitcnt lgkmcnt(0)")
    for t in range(32):
        br = 32 + t; bi = 64 + t
        A(f"v_fma_f32 v8, v20, v6, v{br}")
        A(f"v_fma_f32 v9, v20, v7, v{bi}")
        A(f"v_fma_f32 v8, -v21, v7, v8")
        A(f"v_fma_f32 v7, v21, v6, v9")
        A(f"v_mov_b32 v6, v8")
        A(f"buffer_store_dword v6, v4, s[56:59], s67 offen")
        A(f"buffer_store_dword v7, v5, s[56:59], s67 offen")
        A("s_add_u32 s67, s67, 5120")
    A("s_mul_i32 s67, s65, 5120")
    A(f"buffer_store_dword v6, v4, s[60:63], s67 offen")
    A(f"buffer_store_dword v7, v5, s[60:63], s67 offen")
    A("s_branch K1_END")
    A.label("K1_FFN")
    A("s_sub_u32 s42, s2, 160")
    A("s_lshr_b32 s42, s42, 4")
    A("s_lshl_b32 s43, s42, 7")
    build_srd(12, 34, D*DFF*2)
    A("v_lshrrev_b32 v1, 4, v0")
    A("v_mul_u32_u24 v1, 3456, v1")
    A("v_and_b32 v2, 15, v0")
    A("v_lshl_add_u32 v1, v2, 4, v1")
    A("s_lshl_b32 s44, s43, 1")
    A(f"v_add_u32 v{R['voffB']}, s44, v1")
    for j in range(1, 4):
        A(f"v_add_u32 v{R['voffB']+j}, {16*3456*j}, v{R['voffB']}")
    segs = [dict(srdA=8, koffA=k*128, voffA=R['voffA'], srdB=12, koffB=k*64*3456, voffB=R['voffB'], tr=True)
            for k in range(10)]
    gemm(segs, R, 2, 2, 4, True, accs)
    A("v_bfe_u32 v2, v0, 6, 1")
    A("s_nop 1")
    A("v_readfirstlane_b32 s45, v2")
    A("s_nop 3")
    A("s_lshl_b32 s45, s45, 6")
    A("s_add_u32 s45, s45, s43")
    A("s_cmp_ge_u32 s45, 1728")
    A("s_cbranch_scc1 K1_END")
    build_srd(56, 36, L*DFF*2, WS_H)
    A("v_and_b32 v1, 31, v0")
    A("v_lshrrev_b32 v2, 7, v0")
    A("v_lshl_add_u32 v1, v2, 6, v1")
    A("v_add_u32 v1, s41, v1")
    A("v_mul_u32_u24 v1, 3456, v1")
    A("v_bfe_u32 v2, v0, 5, 1")
    A("v_lshl_add_u32 v1, v2, 3, v1")
    A("s_lshl_b32 s45, s45, 1")
    A("v_add_u32 v1, s45, v1")
    A(f"v_add_u32 v2, {32*3456}, v1")
    A("s_nop 7"); A("s_nop 7")
    for i in range(2):
        for j in range(2):
            for jj in range(4):
                a = ACC + (i*2+j)*16 + jj*4
                for r in range(4):
                    A(f"v_max_f32 v{a+r}, 0, v{a+r}")
                A(f"v_cvt_pk_bf16_f32 v{a}, v{a}, v{a+1}")
                A(f"v_cvt_pk_bf16_f32 v{a+1}, v{a+2}, v{a+3}")
                A(f"buffer_store_dwordx2 v[{a}:{a+1}], v{1+i}, s[56:59], 0 offen offset:{(j*32+jj*8)*2}")
    A.label("K1_END")
    A("s_endpgm")
    return kernel_desc("k1_kernel", 160)

def gen_k2():
    kernel_header("k2_kernel")
    A("s_cmp_ge_u32 s2, 576")
    A("s_cbranch_scc1 K2_END")
    A("s_load_dwordx2 s[4:5], s[0:1], 0")
    A("s_load_dwordx4 s[24:27], s[0:1], 8")
    A("s_load_dwordx2 s[32:33], s[0:1], 56")
    A("s_load_dwordx2 s[34:35], s[0:1], 96")
    A("s_load_dwordx2 s[36:37], s[0:1], 120")
    A("s_waitcnt lgkmcnt(0)")
    A("s_cmp_ge_u32 s2, 320")
    A("s_cbranch_scc1 K2_GATE")
    build_srd(44, 24, 1280); build_srd(48, 26, 1280); build_srd(52, 32, 1280)
    build_srd(56, 36, L*1280*4, WS_HLOC)
    build_srd(60, 36, 64*1280*4, WS_E)
    build_srd(64, 36, L*1280*2, WS_HB)
    A("s_mul_hi_u32 s40, s2, 0x33333334")
    A("s_mul_i32 s41, s40, 5")
    A("s_sub_u32 s41, s2, s41")
    A("s_lshl_b32 s41, s41, 7")
    A("v_lshl_add_u32 v1, v0, 1, s41")
    A("v_lshlrev_b32 v2, 1, v1")
    lam_params(2, 44, 48, 52, 10, 20)
    A("v_add_u32 v2, 2, v2")
    lam_params(2, 44, 48, 52, 14, 20)
    A("v_mov_b32 v16, v10"); A("v_mov_b32 v17, v11"); A("v_mov_b32 v18, v14"); A("v_mov_b32 v19, v15")
    for _ in range(5):
        for b in (16, 18):
            A(f"v_mul_f32 v20, v{b+1}, v{b+1}")
            A(f"v_mul_f32 v21, v{b}, v{b+1}")
            A(f"v_fma_f32 v{b}, v{b}, v{b}, -v20")
            A(f"v_add_f32 v{b+1}, v21, v21")
    for r in range(24, 28):
        A(f"v_mov_b32 v{r}, 0")
    A("v_lshlrev_b32 v3, 2, v1")
    A("v_add_u32 v4, 2560, v3")
    A("s_mov_b32 s42, 0")
    A("s_mov_b32 s43, 0")
    A.label("K2_CARRY")
    A("s_cmp_ge_u32 s42, s40")
    A("s_cbranch_scc1 K2_APPLY")
    for u in range(8):
        A(f"buffer_load_dwordx2 v[{32+4*u}:{33+4*u}], v3, s[60:63], s43 offen")
        A(f"buffer_load_dwordx2 v[{34+4*u}:{35+4*u}], v4, s[60:63], s43 offen")
        A("s_add_u32 s43, s43, 5120")
    for u in range(8):
        if u:
            A("s_cmp_ge_u32 s42, s40")
            A("s_cbranch_scc1 K2_APPLY")
        A(f"s_waitcnt vmcnt({14-2*u})")
        for (sre, sim, lr, e) in ((24, 26, 16, 32+4*u), (25, 27, 18, 33+4*u)):
            A(f"v_fma_f32 v20, v{lr}, v{sre}, v{e}")
            A(f"v_fma_f32 v21, v{lr}, v{sim}, v{e+2}")
            A(f"v_fma_f32 v20, -v{lr+1}, v{sim}, v20")
            A(f"v_fma_f32 v{sim}, v{lr+1}, v{sre}, v21")
            A(f"v_mov_b32 v{sre}, v20")
        A("s_add_u32 s42, s42, 1")
    A("s_branch K2_CARRY")
    A.label("K2_APPLY")
    A("s_waitcnt vmcnt(0)")
    A("s_mul_i32 s43, s40, 163840")
    A("s_mul_i32 s44, s40, 81920")
    A("v_lshlrev_b32 v5, 1, v1")
    A("v_add_u32 v6, 1280, v5")
    for half in range(2):
        for t in range(16):
            A(f"buffer_load_dwordx2 v[{32+4*t}:{33+4*t}], v3, s[56:59], s43 offen")
            A(f"buffer_load_dwordx2 v[{34+4*t}:{35+4*t}], v4, s[56:59], s43 offen")
            A("s_add_u32 s43, s43, 5120")
        for t in range(16):
            A(f"s_waitcnt vmcnt({30-2*t})")
            for (sre, sim, lr) in ((24, 26, 10), (25, 27, 14)):
                A(f"v_mul_f32 v20, v{lr+1}, v{sim}")
                A(f"v_mul_f32 v21, v{lr+1}, v{sre}")
                A(f"v_fma_f32 v{sre}, v{lr}, v{sre}, -v20")
                A(f"v_fma_f32 v{sim}, v{lr}, v{sim}, v21")
            b = 32 + 4*t
            A(f"v_add_f32 v{b}, v{b}, v24")
            A(f"v_add_f32 v{b+1}, v{b+1}, v25")
            A(f"v_add_f32 v{b+2}, v{b+2}, v26")
            A(f"v_add_f32 v{b+3}, v{b+3}, v27")
            A(f"v_cvt_pk_bf16_f32 v{b}, v{b}, v{b+1}")
            A(f"v_cvt_pk_bf16_f32 v{b+1}, -v{b+2}, -v{b+3}")
            A(f"buffer_store_dword v{b}, v5, s[64:67], s44 offen")
            A(f"buffer_store_dword v{b+1}, v6, s[64:67], s44 offen")
            A("s_add_u32 s44, s44, 2560")
    A("s_branch K2_END")
    A.label("K2_GATE")
    build_srd(8, 4, L*D*2)
    build_srd(12, 34, 1280)
    build_srd(16, 36, L*4, WS_G)
    A("s_sub_u32 s40, s2, 320")
    A("s_lshl_b32 s40, s40, 3")
    A("v_lshlrev_b32 v1, 2, v0")
    for j in range(5):
        A(f"buffer_load_dword v{10+j}, v1, s[12:15], 0 offen offset:{256*j}")
    A("s_mul_i32 s41, s40, 1280")
    A("s_mov_b32 s42, 0")
    A.label("K2_GROW")
    for j in range(5):
        A(f"buffer_load_dword v{20+j}, v1, s[8:11], s41 offen offset:{256*j}")
    A("s_waitcnt vmcnt(0)")
    A("v_mov_b32 v30, 0")
    for j in range(5):
        A(f"v_lshlrev_b32 v31, 16, v{10+j}")
        A(f"v_lshlrev_b32 v32, 16, v{20+j}")
        A(f"v_and_b32 v33, 0xffff0000, v{10+j}")
        A(f"v_and_b32 v34, 0xffff0000, v{20+j}")
        A("v_mul_f32 v31, v31, v32")
        A("v_mul_f32 v33, v33, v34")
        A("v_cvt_pk_bf16_f32 v31, v31, v33")
        A("v_lshlrev_b32 v32, 16, v31")
        A("v_and_b32 v33, 0xffff0000, v31")
        A("v_add_f32 v30, v30, v32")
        A("v_add_f32 v30, v30, v33")
    for off in (0x041F, 0x081F, 0x101F, 0x201F, 0x401F):
        A(f"ds_swizzle_b32 v31, v30 offset:{off}")
        A("s_waitcnt lgkmcnt(0)")
        A("v_add_f32 v30, v30, v31")
    A("s_nop 1")
    A("v_readlane_b32 s44, v30, 32")
    A("v_readlane_b32 s45, v30, 0")
    A("s_nop 3")
    A("v_mov_b32 v31, s44")
    A("v_add_f32 v31, s45, v31")
    A("v_cvt_pk_bf16_f32 v31, v31, v31")
    A("v_lshlrev_b32 v31, 16, v31")
    A("v_mul_f32 v31, 0xbfb8aa3b, v31")
    A("v_exp_f32 v31, v31")
    A("s_nop 0")
    A("v_add_f32 v31, 1.0, v31")
    A("v_rcp_f32 v31, v31")
    A("s_nop 0")
    A("v_cvt_pk_bf16_f32 v31, v31, v31")
    A("v_lshlrev_b32 v31, 16, v31")
    A("s_add_u32 s46, s40, s42")
    A("s_lshl_b32 s46, s46, 2")
    A("v_mov_b32 v32, 0")
    A("v_cmp_eq_u32 vcc, 0, v0")
    A("s_and_saveexec_b64 s[48:49], vcc")
    A("buffer_store_dword v31, v32, s[16:19], s46 offen")
    A("s_mov_b64 exec, s[48:49]")
    A("s_add_u32 s41, s41, 1280")
    A("s_add_u32 s42, s42, 1")
    A("s_cmp_lt_u32 s42, 8")
    A("s_cbranch_scc1 K2_GROW")
    A.label("K2_END")
    A("s_endpgm")
    return kernel_desc("k2_kernel", 104)

def gen_k3():
    kernel_header("k3_kernel")
    A("s_cmp_ge_u32 s2, 160")
    A("s_cbranch_scc1 K3_END")
    A("s_load_dwordx2 s[4:5], s[0:1], 0")
    A("s_load_dwordx4 s[24:27], s[0:1], 40")
    A("s_load_dwordx2 s[28:29], s[0:1], 64")
    A("s_load_dwordx2 s[30:31], s[0:1], 88")
    A("s_load_dwordx2 s[32:33], s[0:1], 104")
    A("s_load_dwordx2 s[36:37], s[0:1], 120")
    R = dict(wA=4, wB=5, wBt=6, rA=7, rB=8, rBt=9, voffA=10, voffB=14, stA=24, stB=32, fA=[48, 52], fB=[56, 64],
             voffA2=12, voffB2=18)
    ACCY = 72; ACCF = 104
    common_addr(R, 32, 64)
    A("s_waitcnt lgkmcnt(0)")
    A("s_and_b32 s40, s2, 31")
    A("s_lshl_b32 s41, s40, 6")
    A("s_lshr_b32 s42, s2, 5")
    A("s_lshl_b32 s43, s42, 7")
    build_srd(8, 36, L*1280*2, WS_HB)
    build_srd(12, 24, D*P*2)
    build_srd(16, 26, D*P*2)
    build_srd(20, 36, L*DFF*2, WS_H)
    build_srd(44, 30, DFF*D*2)
    A("v_lshrrev_b32 v1, 3, v0")
    A("v_add_u32 v1, s41, v1")
    A("v_and_b32 v2, 7, v0")
    A("v_lshlrev_b32 v2, 4, v2")
    A("v_mul_u32_u24 v3, 2560, v1")
    A(f"v_add_u32 v{R['voffA']}, v2, v3")
    A(f"v_add_u32 v{R['voffA']+1}, {32*2560}, v{R['voffA']}")
    A("v_mul_u32_u24 v3, 3456, v1")
    A(f"v_add_u32 v{R['voffA2']}, v2, v3")
    A(f"v_add_u32 v{R['voffA2']+1}, {32*3456}, v{R['voffA2']}")
    A("v_lshrrev_b32 v1, 3, v0")
    A("v_add_u32 v1, s43, v1")
    A("v_mul_u32_u24 v1, 1280, v1")
    A(f"v_add_u32 v{R['voffB']}, v2, v1")
    for j in range(1, 4):
        A(f"v_add_u32 v{R['voffB']+j}, {32*1280*j}, v{R['voffB']}")
    A("v_lshrrev_b32 v1, 4, v0")
    A("v_mul_u32_u24 v1, 1280, v1")
    A("v_and_b32 v2, 15, v0")
    A("v_lshl_add_u32 v1, v2, 4, v1")
    A("s_lshl_b32 s48, s43, 1")
    A(f"v_add_u32 v{R['voffB2']}, s48, v1")
    for j in range(1, 4):
        A(f"v_add_u32 v{R['voffB2']+j}, {16*1280*j}, v{R['voffB2']}")
    for r in range(64):
        A(f"v_mov_b32 v{ACCY+r}, 0")
    segs = []; accs = []
    for k in range(20):
        segs.append(dict(srdA=8, koffA=k*128, voffA=R['voffA'], srdB=12 if k < 10 else 16, koffB=(k % 10)*128,
                         voffB=R['voffB'], tr=False))
        accs.append([ACCY, ACCY+16])
    for k in range(27):
        segs.append(dict(srdA=20, koffA=k*128, voffA=R['voffA2'], srdB=44, koffB=k*64*1280, voffB=R['voffB2'], tr=True))
        accs.append([ACCF, ACCF+16])
    gemm(segs, R, 1, 2, 2, True, accs)
    build_srd(8, 4, L*D*2)
    build_srd(12, 28, 1280)
    build_srd(16, 36, L*4, WS_G)
    build_srd(20, 32, L*D*4)
    A("v_and_b32 v1, 31, v0")
    A("v_lshrrev_b32 v2, 7, v0")
    A("v_lshl_add_u32 v1, v2, 5, v1")
    A("v_add_u32 v1, s41, v1")
    A("v_lshlrev_b32 v2, 2, v1")
    A("buffer_load_dword v10, v2, s[16:19], 0 offen")
    A("v_bfe_u32 v2, v0, 6, 1")
    A("v_lshlrev_b32 v2, 6, v2")
    A("v_bfe_u32 v3, v0, 5, 1")
    A("v_lshl_add_u32 v2, v3, 2, v2")
    A("v_add_u32 v2, s43, v2")
    A("v_mul_u32_u24 v3, 640, v1")
    A("v_add_u32 v3, v3, v2")
    A("v_lshlrev_b32 v4, 1, v3")
    A("v_lshlrev_b32 v5, 2, v3")
    A("v_lshlrev_b32 v6, 1, v2")
    for j in range(2):
        for jj in range(4):
            q = j*4 + jj
            A(f"buffer_load_dwordx2 v[{12+2*q}:{13+2*q}], v4, s[8:11], 0 offen offset:{(j*32+jj*8)*2}")
            A(f"buffer_load_dwordx2 v[{28+2*q}:{29+2*q}], v6, s[12:15], 0 offen offset:{(j*32+jj*8)*2}")
    A("s_waitcnt vmcnt(0)")
    A("v_sub_f32 v11, 1.0, v10")
    A("v_cvt_pk_bf16_f32 v11, v11, v11")
    A("v_lshlrev_b32 v11, 16, v11")
    for j in range(2):
        for jj in range(4):
            q = j*4 + jj
            ay = ACCY + j*16 + jj*4; af = ACCF + j*16 + jj*4
            for r in range(4):
                xs = 12 + 2*q + (r >> 1); dsk = 28 + 2*q + (r >> 1)
                if r & 1:
                    A(f"v_and_b32 v44, 0xffff0000, v{xs}")
                    A(f"v_and_b32 v45, 0xffff0000, v{dsk}")
                else:
                    A(f"v_lshlrev_b32 v44, 16, v{xs}")
                    A(f"v_lshlrev_b32 v45, 16, v{dsk}")
                A("v_mul_f32 v44, v44, v45")
                A(f"v_cvt_pk_bf16_f32 v44, v44, v{af+r}")
                A("v_lshlrev_b32 v45, 16, v44")
                A("v_and_b32 v44, 0xffff0000, v44")
                A(f"v_fma_f32 v45, 2.0, v{ay+r}, v45")
                A("v_mul_f32 v44, v11, v44")
                A("v_cvt_pk_bf16_f32 v44, v44, v44")
                A("v_lshlrev_b32 v44, 16, v44")
                A(f"v_mul_f32 v45, v10, v45")
                A(f"v_add_f32 v{ay+r}, v45, v44")
            A(f"buffer_store_dwordx4 v[{ay}:{ay+3}], v5, s[20:23], 0 offen offset:{(j*32+jj*8)*4}")
    A.label("K3_END")
    A("s_endpgm")
    return kernel_desc("k3_kernel", 136)

HDR = open('gated_mix__ssm_conv_s5__dense_activation_relu__prompt.s.ref').read().split('; Override launch')[0]
out = HDR
out += "; @launch kernel=k1_kernel grid=(384,1,1) block=(256,1,1) lds=77824\n"
out += "; @launch kernel=k2_kernel grid=(576,1,1) block=(64,1,1) lds=0\n"
out += "; @launch kernel=k3_kernel grid=(160,1,1) block=(256,1,1) lds=77824\n"
out += '.amdgcn_target "amdgcn-amd-amdhsa--gfx950"\n.text\n'
d1 = gen_k1(); d2 = gen_k2(); d3 = gen_k3()
out += A.text()
out += '.section .rodata,"a"\n.p2align 6\n' + d1 + '.p2align 6\n' + d2 + '.p2align 6\n' + d3
open(sys.argv[1] if len(sys.argv) > 1 else 'gated_mix__ssm_conv_s5__dense_activation_relu__prompt.s', 'w').write(out)
```

```python
import sys

L = 2048; D = 640; P = 640; DFF = 1728
WS_H    = 0x0
WS_HLOC = 0x800000
WS_E    = 0x1400000
WS_HB   = 0x1500000
WS_G    = 0x1A00000
WS_SIZE = 0x1B00000

class Asm:
    def __init__(self):
        self.lines = []
    def __call__(self, s):
        self.lines.append("    " + s)
    def label(self, s):
        self.lines.append(s + ":")
    def raw(self, s):
        self.lines.append(s)
    def text(self):
        return "\n".join(self.lines) + "\n"

A = Asm()
BUFSZ = 38912
BOFF = 18432

def vr(b, n=1):
    return f"v{b}" if n == 1 else f"v[{b}:{b+n-1}]"
def sr(b, n=1):
    return f"s{b}" if n == 1 else f"s[{b}:{b+n-1}]"

def build_srd(dst, ptr, nbytes, add=0):
    if add:
        A(f"s_add_u32 s{dst}, s{ptr}, {add}")
        A(f"s_addc_u32 s{dst+1}, s{ptr+1}, 0")
    else:
        A(f"s_mov_b32 s{dst}, s{ptr}")
        A(f"s_mov_b32 s{dst+1}, s{ptr+1}")
    A(f"s_mov_b32 s{dst+2}, {nbytes}")
    A(f"s_mov_b32 s{dst+3}, 0x00020000")

def lam_params(vch2, srd_lre, srd_lim, srd_ldt, o, tmp):
    t0, t1, t2, t3, t4, t5 = [tmp + i for i in range(6)]
    A(f"buffer_load_ushort v{t0}, v{vch2}, {sr(srd_lre,4)}, 0 offen")
    A(f"buffer_load_ushort v{t1}, v{vch2}, {sr(srd_lim,4)}, 0 offen")
    A(f"buffer_load_ushort v{t2}, v{vch2}, {sr(srd_ldt,4)}, 0 offen")
    A("s_waitcnt vmcnt(0)")
    A(f"v_lshlrev_b32 v{t0}, 16, v{t0}")
    A(f"v_lshlrev_b32 v{t1}, 16, v{t1}")
    A(f"v_lshlrev_b32 v{t2}, 16, v{t2}")
    A(f"v_mul_f32 v{t2}, 0x3fb8aa3b, v{t2}")
    A(f"v_exp_f32 v{t2}, v{t2}")
    A("s_nop 0")
    A(f"v_cvt_pk_bf16_f32 v{t2}, v{t2}, v{t2}")
    A(f"v_lshlrev_b32 v{t2}, 16, v{t2}")
    A(f"v_mul_f32 v{t3}, v{t2}, v{t0}")
    A(f"v_mul_f32 v{t4}, v{t2}, v{t1}")
    A(f"v_mul_f32 v{t3}, 0x3fb8aa3b, v{t3}")
    A(f"v_exp_f32 v{t3}, v{t3}")
    A(f"v_mul_f32 v{t4}, 0.15915494, v{t4}")
    A(f"v_cos_f32 v{t5}, v{t4}")
    A(f"v_sin_f32 v{t4}, v{t4}")
    A("s_nop 0")
    A(f"v_mul_f32 v{o}, v{t3}, v{t5}")
    A(f"v_mul_f32 v{o+1}, v{t3}, v{t4}")
    A(f"v_add_f32 v{t3}, -1.0, v{o}")
    A(f"v_mul_f32 v{t4}, v{t0}, v{t0}")
    A(f"v_fmac_f32 v{t4}, v{t1}, v{t1}")
    A(f"v_rcp_f32 v{t4}, v{t4}")
    A(f"v_mul_f32 v{t5}, v{t3}, v{t0}")
    A(f"v_fmac_f32 v{t5}, v{o+1}, v{t1}")
    A(f"v_mul_f32 v{o+3}, v{o+1}, v{t0}")
    A(f"v_fma_f32 v{o+3}, -v{t3}, v{t1}, v{o+3}")
    A(f"v_mul_f32 v{o+2}, v{t5}, v{t4}")
    A(f"v_mul_f32 v{o+3}, v{o+3}, v{t4}")

def kernel_header(name):
    A.raw(f".globl {name}")
    A.raw(".p2align 8")
    A.raw(f".type {name},@function")
    A.label(name)

def kernel_desc(name, vgpr, sgpr=100):
    vg = (vgpr + 7) // 8 * 8
    return f""".amdhsa_kernel {name}
  .amdhsa_next_free_vgpr {vg}
  .amdhsa_next_free_sgpr {sgpr}
  .amdhsa_accum_offset {vg}
  .amdhsa_group_segment_fixed_size 0
  .amdhsa_kernarg_size 128
  .amdhsa_user_sgpr_count 2
  .amdhsa_user_sgpr_kernarg_segment_ptr 1
  .amdhsa_system_sgpr_workgroup_id_x 1
.end_amdhsa_kernel
"""

def gemm(segs, R, NI, NJ, nA, swapped, accs, deep=False):
    nk = len(segs)
    def st(it):
        return (R['stA2'], R['stB2']) if (deep and it & 1) else (R['stA'], R['stB'])
    def issue_loads(it):
        s = segs[it]; sa, sb = st(it)
        A(f"s_mov_b32 s90, {s['koffA']}")
        A(f"s_mov_b32 s91, {s['koffB']}")
        for j in range(nA):
            A(f"buffer_load_dwordx4 {vr(sa+4*j,4)}, v{s['voffA']+j}, {sr(s['srdA'],4)}, s90 offen")
        for j in range(4):
            srd = s['srdB'][j] if isinstance(s['srdB'], list) else s['srdB']
            A(f"buffer_load_dwordx4 {vr(sb+4*j,4)}, v{s['voffB']+j}, {sr(srd,4)}, s91 offen")
    def write_lds(it):
        s = segs[it]; buf = (it & 1) * BUFSZ; sa, sb = st(it)
        for j in range(nA):
            A(f"ds_write_b128 v{R['wA']}, {vr(sa+4*j,4)} offset:{buf + j*4608}")
        for j in range(4):
            if s['tr']:
                A(f"ds_write_b128 v{R['wBt']}, {vr(sb+4*j,4)} offset:{buf + j*5120}")
            else:
                A(f"ds_write_b128 v{R['wB']}, {vr(sb+4*j,4)} offset:{buf + j*4608}")
    def reads(it, kk):
        s = segs[it]; buf = (it & 1) * BUFSZ; fs = kk & 1
        n = 0
        for i in range(NI):
            A(f"ds_read_b128 {vr(R['fA'][fs]+4*i,4)}, v{R['rA']} offset:{buf + i*4608 + kk*32}")
            n += 1
        for j in range(NJ):
            if s['tr']:
                for h in range(2):
                    A(f"ds_read_b64_tr_b16 {vr(R['fB'][fs]+4*j+2*h,2)}, v{R['rBt']} offset:{buf + (kk*16+h*4)*320 + j*64}")
                    n += 1
            else:
                A(f"ds_read_b128 {vr(R['fB'][fs]+4*j,4)}, v{R['rB']} offset:{buf + j*4608 + kk*32}")
                n += 1
        return n
    issue_loads(0)
    if deep and nk > 1:
        issue_loads(1)
        A(f"s_waitcnt vmcnt({nA+4})")
    else:
        A("s_waitcnt vmcnt(0)")
    write_lds(0)
    A("s_waitcnt lgkmcnt(0)")
    A("s_barrier")
    for it in range(nk):
        if deep:
            if it + 2 < nk:
                issue_loads(it + 2)
        elif it + 1 < nk:
            issue_loads(it + 1)
        n = reads(it, 0)
        for kk in range(4):
            if kk < 3:
                n = reads(it, kk + 1)
                A(f"s_waitcnt lgkmcnt({n})")
            else:
                A("s_waitcnt lgkmcnt(0)")
            fs = kk & 1
            for i in range(NI):
                for j in range(NJ):
                    acc = accs[it][i*NJ + j]
                    fa = vr(R['fA'][fs]+4*i, 4); fb = vr(R['fB'][fs]+4*j, 4)
                    if swapped:
                        A(f"v_mfma_f32_32x32x16_bf16 {vr(acc,16)}, {fb}, {fa}, {vr(acc,16)}")
                    else:
                        A(f"v_mfma_f32_32x32x16_bf16 {vr(acc,16)}, {fa}, {fb}, {vr(acc,16)}")
        if it + 1 < nk:
            A(f"s_waitcnt vmcnt({nA+4 if (deep and it + 2 < nk) else 0})")
            write_lds(it + 1)
            A("s_waitcnt lgkmcnt(0)")
        A("s_barrier")

def common_addr(R, WM, WN):
    A("v_lshrrev_b32 v1, 3, v0")
    A(f"v_mul_u32_u24 v1, 144, v1")
    A("v_and_b32 v2, 7, v0")
    A(f"v_lshl_add_u32 v{R['wA']}, v2, 4, v1")
    A(f"v_add_u32 v{R['wB']}, {BOFF}, v{R['wA']}")
    A("v_lshrrev_b32 v1, 4, v0")
    A(f"v_mul_u32_u24 v1, 320, v1")
    A("v_and_b32 v2, 15, v0")
    A(f"v_lshl_add_u32 v{R['wBt']}, v2, 4, v1")
    A(f"v_add_u32 v{R['wBt']}, {BOFF}, v{R['wBt']}")
    A("v_and_b32 v1, 31, v0")
    A("v_bfe_u32 v2, v0, 5, 1")
    A("v_lshrrev_b32 v3, 7, v0")
    A(f"v_mul_u32_u24 v3, {WM}, v3")
    A("v_add_u32 v3, v3, v1")
    A("v_mul_u32_u24 v3, 144, v3")
    A(f"v_lshl_add_u32 v{R['rA']}, v2, 4, v3")
    A("v_bfe_u32 v3, v0, 6, 1")
    A(f"v_mul_u32_u24 v3, {WN}, v3")
    A("v_add_u32 v3, v3, v1")
    A("v_mul_u32_u24 v3, 144, v3")
    A(f"v_lshl_add_u32 v3, v2, 4, v3")
    A(f"v_add_u32 v{R['rB']}, {BOFF}, v3")
    A("v_bfe_u32 v1, v0, 2, 2")
    A("v_lshl_add_u32 v1, v2, 3, v1")
    A("v_mul_u32_u24 v1, 320, v1")
    A("v_bfe_u32 v3, v0, 6, 1")
    A(f"v_mul_u32_u24 v3, {WN}, v3")
    A("v_bfe_u32 v2, v0, 4, 1")
    A("v_lshl_add_u32 v3, v2, 4, v3")
    A("v_and_b32 v2, 3, v0")
    A("v_lshl_add_u32 v3, v2, 2, v3")
    A("v_lshl_add_u32 v1, v3, 1, v1")
    A(f"v_add_u32 v{R['rBt']}, {BOFF}, v1")

def gen_k1():
    kernel_header("k1_kernel")
    A("s_cmp_ge_u32 s2, 384")
    A("s_cbranch_scc1 K1_END")
    A("s_load_dwordx2 s[4:5], s[0:1], 0")
    A("s_load_dwordx4 s[24:27], s[0:1], 8")
    A("s_load_dwordx4 s[28:31], s[0:1], 24")
    A("s_load_dwordx2 s[32:33], s[0:1], 56")
    A("s_load_dwordx2 s[34:35], s[0:1], 80")
    A("s_load_dwordx2 s[36:37], s[0:1], 120")
    R = dict(wA=4, wB=5, wBt=6, rA=7, rB=8, rBt=9, voffA=10, voffB=14, stA=20, stB=36, fA=[52, 60], fB=[68, 76])
    ACC = 96
    common_addr(R, 64, 64)
    A("s_waitcnt lgkmcnt(0)")
    build_srd(8, 4, L*D*2)
    A("s_and_b32 s40, s2, 15")
    A("s_lshl_b32 s41, s40, 7")
    A("v_lshrrev_b32 v1, 3, v0")
    A("v_add_u32 v1, s41, v1")
    A("v_mul_u32_u24 v1, 1280, v1")
    A("v_and_b32 v2, 7, v0")
    A(f"v_lshl_add_u32 v{R['voffA']}, v2, 4, v1")
    for j in range(1, 4):
        A(f"v_add_u32 v{R['voffA']+j}, {32*1280*j}, v{R['voffA']}")
    for r in range(64):
        A(f"v_mov_b32 v{ACC+r}, 0")
    A("s_cmp_ge_u32 s2, 160")
    A("s_cbranch_scc1 K1_FFN")
    A("s_lshr_b32 s42, s2, 4")
    A("s_lshl_b32 s43, s42, 6")
    build_srd(12, 28, P*D*2)
    build_srd(16, 30, P*D*2)
    A("v_lshrrev_b32 v1, 3, v0")
    A("v_add_u32 v1, s43, v1")
    A("v_mul_u32_u24 v1, 1280, v1")
    A("v_and_b32 v2, 7, v0")
    A(f"v_lshl_add_u32 v{R['voffB']}, v2, 4, v1")
    A(f"v_mov_b32 v{R['voffB']+1}, v{R['voffB']}")
    A(f"v_add_u32 v{R['voffB']+2}, {32*1280}, v{R['voffB']}")
    A(f"v_mov_b32 v{R['voffB']+3}, v{R['voffB']+2}")
    segs = [dict(srdA=8, koffA=k*128, voffA=R['voffA'], srdB=[12, 16, 12, 16], koffB=k*128, voffB=R['voffB'], tr=False)
            for k in range(10)]
    accs = [[ACC, ACC+16, ACC+32, ACC+48]] * 10
    gemm(segs, R, 2, 2, 4, False, accs)
    build_srd(44, 24, 1280); build_srd(48, 26, 1280); build_srd(52, 32, 1280)
    A("v_and_b32 v1, 31, v0")
    A("v_bfe_u32 v2, v0, 6, 1")
    A("v_lshl_add_u32 v1, v2, 5, v1")
    A("v_add_u32 v2, s43, v1")
    A("v_lshlrev_b32 v2, 1, v2")
    lam_params(2, 44, 48, 52, 20, 24)
    A("v_mul_u32_u24 v3, 528, v1")
    A("v_lshrrev_b32 v2, 7, v0")
    A("v_lshlrev_b32 v2, 8, v2")
    A("v_add_u32 v3, v3, v2")
    A("v_bfe_u32 v2, v0, 5, 1")
    A("v_lshl_add_u32 v3, v2, 4, v3")
    A("s_nop 7"); A("s_nop 7")
    for i in range(2):
        for jj in range(4):
            for r in range(4):
                xr = ACC + (i*2+0)*16 + jj*4 + r; xi = ACC + (i*2+1)*16 + jj*4 + r
                A(f"v_mul_f32 v{28+r}, v22, v{xr}")
                A(f"v_fma_f32 v{28+r}, -v23, v{xi}, v{28+r}")
                A(f"v_mul_f32 v{32+r}, v22, v{xi}")
                A(f"v_fma_f32 v{32+r}, v23, v{xr}, v{32+r}")
            A(f"ds_write_b128 v3, v[28:31] offset:{(i*32+jj*8)*4}")
            A(f"ds_write_b128 v3, v[32:35] offset:{(i*32+jj*8)*4 + 64*528}")
            A("s_nop 1")
    A("s_waitcnt lgkmcnt(0)")
    A("s_barrier")
    A("v_and_b32 v1, 63, v0")
    A("v_add_u32 v2, s43, v1")
    A("v_lshlrev_b32 v2, 1, v2")
    lam_params(2, 44, 48, 52, 20, 24)
    A("v_mul_u32_u24 v3, 528, v1")
    A("v_lshrrev_b32 v2, 6, v0")
    A("v_lshl_add_u32 v3, v2, 7, v3")
    for u in range(8):
        A(f"ds_read_b128 v[{32+4*u}:{35+4*u}], v3 offset:{16*u}")
        A(f"ds_read_b128 v[{64+4*u}:{67+4*u}], v3 offset:{16*u + 64*528}")
    build_srd(56, 36, L*1280*4, WS_HLOC)
    build_srd(60, 36, 64*1280*4, WS_E)
    A("v_readfirstlane_b32 s64, v2")
    A("s_lshl_b32 s65, s40, 2")
    A("s_add_u32 s65, s65, s64")
    A("s_lshl_b32 s66, s65, 5")
    A("s_mul_i32 s67, s66, 5120")
    A("v_add_u32 v4, s43, v1")
    A("v_lshlrev_b32 v4, 2, v4")
    A("v_add_u32 v5, 2560, v4")
    A("v_mov_b32 v6, 0")
    A("v_mov_b32 v7, 0")
    A("s_waitcnt lgkmcnt(0)")
    for t in range(32):
        br = 32 + t; bi = 64 + t
        A(f"v_fma_f32 v8, v20, v6, v{br}")
        A(f"v_fma_f32 v9, v20, v7, v{bi}")
        A(f"v_fma_f32 v8, -v21, v7, v8")
        A(f"v_fma_f32 v7, v21, v6, v9")
        A(f"v_mov_b32 v6, v8")
        A(f"buffer_store_dword v6, v4, s[56:59], s67 offen")
        A(f"buffer_store_dword v7, v5, s[56:59], s67 offen")
        A("s_add_u32 s67, s67, 5120")
    A("s_mul_i32 s67, s65, 5120")
    A(f"buffer_store_dword v6, v4, s[60:63], s67 offen")
    A(f"buffer_store_dword v7, v5, s[60:63], s67 offen")
    A("s_branch K1_END")
    A.label("K1_FFN")
    A("s_sub_u32 s42, s2, 160")
    A("s_lshr_b32 s42, s42, 4")
    A("s_lshl_b32 s43, s42, 7")
    build_srd(12, 34, D*DFF*2)
    A("v_lshrrev_b32 v1, 4, v0")
    A("v_mul_u32_u24 v1, 3456, v1")
    A("v_and_b32 v2, 15, v0")
    A("v_lshl_add_u32 v1, v2, 4, v1")
    A("s_lshl_b32 s44, s43, 1")
    A(f"v_add_u32 v{R['voffB']}, s44, v1")
    for j in range(1, 4):
        A(f"v_add_u32 v{R['voffB']+j}, {16*3456*j}, v{R['voffB']}")
    segs = [dict(srdA=8, koffA=k*128, voffA=R['voffA'], srdB=12, koffB=k*64*3456, voffB=R['voffB'], tr=True)
            for k in range(10)]
    gemm(segs, R, 2, 2, 4, True, accs)
    A("v_bfe_u32 v2, v0, 6, 1")
    A("s_nop 1")
    A("v_readfirstlane_b32 s45, v2")
    A("s_nop 3")
    A("s_lshl_b32 s45, s45, 6")
    A("s_add_u32 s45, s45, s43")
    A("s_cmp_ge_u32 s45, 1728")
    A("s_cbranch_scc1 K1_END")
    build_srd(56, 36, L*DFF*2, WS_H)
    A("v_and_b32 v1, 31, v0")
    A("v_lshrrev_b32 v2, 7, v0")
    A("v_lshl_add_u32 v1, v2, 6, v1")
    A("v_add_u32 v1, s41, v1")
    A("v_mul_u32_u24 v1, 3456, v1")
    A("v_bfe_u32 v2, v0, 5, 1")
    A("v_lshl_add_u32 v1, v2, 3, v1")
    A("s_lshl_b32 s45, s45, 1")
    A("v_add_u32 v1, s45, v1")
    A(f"v_add_u32 v2, {32*3456}, v1")
    A("s_nop 7"); A("s_nop 7")
    for i in range(2):
        for j in range(2):
            for jj in range(4):
                a = ACC + (i*2+j)*16 + jj*4
                for r in range(4):
                    A(f"v_max_f32 v{a+r}, 0, v{a+r}")
                A(f"v_cvt_pk_bf16_f32 v{a}, v{a}, v{a+1}")
                A(f"v_cvt_pk_bf16_f32 v{a+1}, v{a+2}, v{a+3}")
                A(f"buffer_store_dwordx2 v[{a}:{a+1}], v{1+i}, s[56:59], 0 offen offset:{(j*32+jj*8)*2}")
    A.label("K1_END")
    A("s_endpgm")
    return kernel_desc("k1_kernel", 160)

def gen_k2():
    kernel_header("k2_kernel")
    A("s_cmp_ge_u32 s2, 576")
    A("s_cbranch_scc1 K2_END")
    A("s_load_dwordx2 s[4:5], s[0:1], 0")
    A("s_load_dwordx4 s[24:27], s[0:1], 8")
    A("s_load_dwordx2 s[32:33], s[0:1], 56")
    A("s_load_dwordx2 s[34:35], s[0:1], 96")
    A("s_load_dwordx2 s[36:37], s[0:1], 120")
    A("s_waitcnt lgkmcnt(0)")
    A("s_cmp_ge_u32 s2, 320")
    A("s_cbranch_scc1 K2_GATE")
    build_srd(44, 24, 1280); build_srd(48, 26, 1280); build_srd(52, 32, 1280)
    build_srd(56, 36, L*1280*4, WS_HLOC)
    build_srd(60, 36, 64*1280*4, WS_E)
    build_srd(64, 36, L*1280*2, WS_HB)
    A("s_mul_hi_u32 s40, s2, 0x33333334")
    A("s_mul_i32 s41, s40, 5")
    A("s_sub_u32 s41, s2, s41")
    A("s_lshl_b32 s41, s41, 7")
    A("v_lshl_add_u32 v1, v0, 1, s41")
    A("v_lshlrev_b32 v2, 1, v1")
    lam_params(2, 44, 48, 52, 10, 20)
    A("v_add_u32 v2, 2, v2")
    lam_params(2, 44, 48, 52, 14, 20)
    A("v_mov_b32 v16, v10"); A("v_mov_b32 v17, v11"); A("v_mov_b32 v18, v14"); A("v_mov_b32 v19, v15")
    for _ in range(5):
        for b in (16, 18):
            A(f"v_mul_f32 v20, v{b+1}, v{b+1}")
            A(f"v_mul_f32 v21, v{b}, v{b+1}")
            A(f"v_fma_f32 v{b}, v{b}, v{b}, -v20")
            A(f"v_add_f32 v{b+1}, v21, v21")
    for r in range(24, 28):
        A(f"v_mov_b32 v{r}, 0")
    A("v_lshlrev_b32 v3, 2, v1")
    A("v_add_u32 v4, 2560, v3")
    A("s_mov_b32 s42, 0")
    A("s_mov_b32 s43, 0")
    A.label("K2_CARRY")
    A("s_cmp_ge_u32 s42, s40")
    A("s_cbranch_scc1 K2_APPLY")
    for u in range(8):
        A(f"buffer_load_dwordx2 v[{32+4*u}:{33+4*u}], v3, s[60:63], s43 offen")
        A(f"buffer_load_dwordx2 v[{34+4*u}:{35+4*u}], v4, s[60:63], s43 offen")
        A("s_add_u32 s43, s43, 5120")
    for u in range(8):
        if u:
            A("s_cmp_ge_u32 s42, s40")
            A("s_cbranch_scc1 K2_APPLY")
        A(f"s_waitcnt vmcnt({14-2*u})")
        for (sre, sim, lr, e) in ((24, 26, 16, 32+4*u), (25, 27, 18, 33+4*u)):
            A(f"v_fma_f32 v20, v{lr}, v{sre}, v{e}")
            A(f"v_fma_f32 v21, v{lr}, v{sim}, v{e+2}")
            A(f"v_fma_f32 v20, -v{lr+1}, v{sim}, v20")
            A(f"v_fma_f32 v{sim}, v{lr+1}, v{sre}, v21")
            A(f"v_mov_b32 v{sre}, v20")
        A("s_add_u32 s42, s42, 1")
    A("s_branch K2_CARRY")
    A.label("K2_APPLY")
    A("s_waitcnt vmcnt(0)")
    A("s_mul_i32 s43, s40, 163840")
    A("s_mul_i32 s44, s40, 81920")
    A("v_lshlrev_b32 v5, 1, v1")
    A("v_add_u32 v6, 1280, v5")
    for half in range(2):
        for t in range(16):
            A(f"buffer_load_dwordx2 v[{32+4*t}:{33+4*t}], v3, s[56:59], s43 offen")
            A(f"buffer_load_dwordx2 v[{34+4*t}:{35+4*t}], v4, s[56:59], s43 offen")
            A("s_add_u32 s43, s43, 5120")
        for t in range(16):
            A(f"s_waitcnt vmcnt({30-2*t})")
            for (sre, sim, lr) in ((24, 26, 10), (25, 27, 14)):
                A(f"v_mul_f32 v20, v{lr+1}, v{sim}")
                A(f"v_mul_f32 v21, v{lr+1}, v{sre}")
                A(f"v_fma_f32 v{sre}, v{lr}, v{sre}, -v20")
                A(f"v_fma_f32 v{sim}, v{lr}, v{sim}, v21")
            b = 32 + 4*t
            A(f"v_add_f32 v{b}, v{b}, v24")
            A(f"v_add_f32 v{b+1}, v{b+1}, v25")
            A(f"v_add_f32 v{b+2}, v{b+2}, v26")
            A(f"v_add_f32 v{b+3}, v{b+3}, v27")
            A(f"v_cvt_pk_bf16_f32 v{b}, v{b}, v{b+1}")
            A(f"v_cvt_pk_bf16_f32 v{b+1}, -v{b+2}, -v{b+3}")
            A(f"buffer_store_dword v{b}, v5, s[64:67], s44 offen")
            A(f"buffer_store_dword v{b+1}, v6, s[64:67], s44 offen")
            A("s_add_u32 s44, s44, 2560")
    A("s_branch K2_END")
    A.label("K2_GATE")
    build_srd(8, 4, L*D*2)
    build_srd(12, 34, 1280)
    build_srd(16, 36, L*4, WS_G)
    A("s_sub_u32 s40, s2, 320")
    A("s_lshl_b32 s40, s40, 3")
    A("v_lshlrev_b32 v1, 2, v0")
    for j in range(5):
        A(f"buffer_load_dword v{10+j}, v1, s[12:15], 0 offen offset:{256*j}")
    A("s_mul_i32 s41, s40, 1280")
    A("s_mov_b32 s42, 0")
    A.label("K2_GROW")
    for j in range(5):
        A(f"buffer_load_dword v{20+j}, v1, s[8:11], s41 offen offset:{256*j}")
    A("s_waitcnt vmcnt(0)")
    A("v_mov_b32 v30, 0")
    for j in range(5):
        A(f"v_lshlrev_b32 v31, 16, v{10+j}")
        A(f"v_lshlrev_b32 v32, 16, v{20+j}")
        A(f"v_and_b32 v33, 0xffff0000, v{10+j}")
        A(f"v_and_b32 v34, 0xffff0000, v{20+j}")
        A("v_mul_f32 v31, v31, v32")
        A("v_mul_f32 v33, v33, v34")
        A("v_cvt_pk_bf16_f32 v31, v31, v33")
        A("v_lshlrev_b32 v32, 16, v31")
        A("v_and_b32 v33, 0xffff0000, v31")
        A("v_add_f32 v30, v30, v32")
        A("v_add_f32 v30, v30, v33")
    for off in (0x041F, 0x081F, 0x101F, 0x201F, 0x401F):
        A(f"ds_swizzle_b32 v31, v30 offset:{off}")
        A("s_waitcnt lgkmcnt(0)")
        A("v_add_f32 v30, v30, v31")
    A("s_nop 1")
    A("v_readlane_b32 s44, v30, 32")
    A("v_readlane_b32 s45, v30, 0")
    A("s_nop 3")
    A("v_mov_b32 v31, s44")
    A("v_add_f32 v31, s45, v31")
    A("v_cvt_pk_bf16_f32 v31, v31, v31")
    A("v_lshlrev_b32 v31, 16, v31")
    A("v_mul_f32 v31, 0xbfb8aa3b, v31")
    A("v_exp_f32 v31, v31")
    A("s_nop 0")
    A("v_add_f32 v31, 1.0, v31")
    A("v_rcp_f32 v31, v31")
    A("s_nop 0")
    A("v_cvt_pk_bf16_f32 v31, v31, v31")
    A("v_lshlrev_b32 v31, 16, v31")
    A("s_add_u32 s46, s40, s42")
    A("s_lshl_b32 s46, s46, 2")
    A("v_mov_b32 v32, 0")
    A("v_cmp_eq_u32 vcc, 0, v0")
    A("s_and_saveexec_b64 s[48:49], vcc")
    A("buffer_store_dword v31, v32, s[16:19], s46 offen")
    A("s_mov_b64 exec, s[48:49]")
    A("s_add_u32 s41, s41, 1280")
    A("s_add_u32 s42, s42, 1")
    A("s_cmp_lt_u32 s42, 8")
    A("s_cbranch_scc1 K2_GROW")
    A.label("K2_END")
    A("s_endpgm")
    return kernel_desc("k2_kernel", 104)

def gen_k3():
    kernel_header("k3_kernel")
    A("s_cmp_ge_u32 s2, 160")
    A("s_cbranch_scc1 K3_END")
    A("s_load_dwordx2 s[4:5], s[0:1], 0")
    A("s_load_dwordx4 s[24:27], s[0:1], 40")
    A("s_load_dwordx2 s[28:29], s[0:1], 64")
    A("s_load_dwordx2 s[30:31], s[0:1], 88")
    A("s_load_dwordx2 s[32:33], s[0:1], 104")
    A("s_load_dwordx2 s[36:37], s[0:1], 120")
    R = dict(wA=4, wB=5, wBt=6, rA=7, rB=8, rBt=9, voffA=10, voffB=14, stA=24, stB=32, fA=[48, 52], fB=[56, 64],
             voffA2=12, voffB2=18, stA2=136, stB2=144)
    ACCY = 72; ACCF = 104
    common_addr(R, 32, 64)
    A("s_waitcnt lgkmcnt(0)")
    A("s_and_b32 s40, s2, 31")
    A("s_lshl_b32 s41, s40, 6")
    A("s_lshr_b32 s42, s2, 5")
    A("s_lshl_b32 s43, s42, 7")
    build_srd(8, 36, L*1280*2, WS_HB)
    build_srd(12, 24, D*P*2)
    build_srd(16, 26, D*P*2)
    build_srd(20, 36, L*DFF*2, WS_H)
    build_srd(44, 30, DFF*D*2)
    A("v_lshrrev_b32 v1, 3, v0")
    A("v_add_u32 v1, s41, v1")
    A("v_and_b32 v2, 7, v0")
    A("v_lshlrev_b32 v2, 4, v2")
    A("v_mul_u32_u24 v3, 2560, v1")
    A(f"v_add_u32 v{R['voffA']}, v2, v3")
    A(f"v_add_u32 v{R['voffA']+1}, {32*2560}, v{R['voffA']}")
    A("v_mul_u32_u24 v3, 3456, v1")
    A(f"v_add_u32 v{R['voffA2']}, v2, v3")
    A(f"v_add_u32 v{R['voffA2']+1}, {32*3456}, v{R['voffA2']}")
    A("v_lshrrev_b32 v1, 3, v0")
    A("v_add_u32 v1, s43, v1")
    A("v_mul_u32_u24 v1, 1280, v1")
    A(f"v_add_u32 v{R['voffB']}, v2, v1")
    for j in range(1, 4):
        A(f"v_add_u32 v{R['voffB']+j}, {32*1280*j}, v{R['voffB']}")
    A("v_lshrrev_b32 v1, 4, v0")
    A("v_mul_u32_u24 v1, 1280, v1")
    A("v_and_b32 v2, 15, v0")
    A("v_lshl_add_u32 v1, v2, 4, v1")
    A("s_lshl_b32 s48, s43, 1")
    A(f"v_add_u32 v{R['voffB2']}, s48, v1")
    for j in range(1, 4):
        A(f"v_add_u32 v{R['voffB2']+j}, {16*1280*j}, v{R['voffB2']}")
    for r in range(64):
        A(f"v_mov_b32 v{ACCY+r}, 0")
    segs = []; accs = []
    for k in range(20):
        segs.append(dict(srdA=8, koffA=k*128, voffA=R['voffA'], srdB=12 if k < 10 else 16, koffB=(k % 10)*128,
                         voffB=R['voffB'], tr=False))
        accs.append([ACCY, ACCY+16])
    for k in range(27):
        segs.append(dict(srdA=20, koffA=k*128, voffA=R['voffA2'], srdB=44, koffB=k*64*1280, voffB=R['voffB2'], tr=True))
        accs.append([ACCF, ACCF+16])
    gemm(segs, R, 1, 2, 2, True, accs, deep=True)
    build_srd(8, 4, L*D*2)
    build_srd(12, 28, 1280)
    build_srd(16, 36, L*4, WS_G)
    build_srd(20, 32, L*D*4)
    A("v_and_b32 v1, 31, v0")
    A("v_lshrrev_b32 v2, 7, v0")
    A("v_lshl_add_u32 v1, v2, 5, v1")
    A("v_add_u32 v1, s41, v1")
    A("v_lshlrev_b32 v2, 2, v1")
    A("buffer_load_dword v10, v2, s[16:19], 0 offen")
    A("v_bfe_u32 v2, v0, 6, 1")
    A("v_lshlrev_b32 v2, 6, v2")
    A("v_bfe_u32 v3, v0, 5, 1")
    A("v_lshl_add_u32 v2, v3, 2, v2")
    A("v_add_u32 v2, s43, v2")
    A("v_mul_u32_u24 v3, 640, v1")
    A("v_add_u32 v3, v3, v2")
    A("v_lshlrev_b32 v4, 1, v3")
    A("v_lshlrev_b32 v5, 2, v3")
    A("v_lshlrev_b32 v6, 1, v2")
    for j in range(2):
        for jj in range(4):
            q = j*4 + jj
            A(f"buffer_load_dwordx2 v[{12+2*q}:{13+2*q}], v4, s[8:11], 0 offen offset:{(j*32+jj*8)*2}")
            A(f"buffer_load_dwordx2 v[{28+2*q}:{29+2*q}], v6, s[12:15], 0 offen offset:{(j*32+jj*8)*2}")
    A("s_waitcnt vmcnt(0)")
    A("v_sub_f32 v11, 1.0, v10")
    A("v_cvt_pk_bf16_f32 v11, v11, v11")
    A("v_lshlrev_b32 v11, 16, v11")
    for j in range(2):
        for jj in range(4):
            q = j*4 + jj
            ay = ACCY + j*16 + jj*4; af = ACCF + j*16 + jj*4
            for r in range(4):
                xs = 12 + 2*q + (r >> 1); dsk = 28 + 2*q + (r >> 1)
                if r & 1:
                    A(f"v_and_b32 v44, 0xffff0000, v{xs}")
                    A(f"v_and_b32 v45, 0xffff0000, v{dsk}")
                else:
                    A(f"v_lshlrev_b32 v44, 16, v{xs}")
                    A(f"v_lshlrev_b32 v45, 16, v{dsk}")
                A("v_mul_f32 v44, v44, v45")
                A(f"v_cvt_pk_bf16_f32 v44, v44, v{af+r}")
                A("v_lshlrev_b32 v45, 16, v44")
                A("v_and_b32 v44, 0xffff0000, v44")
                A(f"v_fma_f32 v45, 2.0, v{ay+r}, v45")
                A("v_mul_f32 v44, v11, v44")
                A("v_cvt_pk_bf16_f32 v44, v44, v44")
                A("v_lshlrev_b32 v44, 16, v44")
                A(f"v_mul_f32 v45, v10, v45")
                A(f"v_add_f32 v{ay+r}, v45, v44")
            A(f"buffer_store_dwordx4 v[{ay}:{ay+3}], v5, s[20:23], 0 offen offset:{(j*32+jj*8)*4}")
    A.label("K3_END")
    A("s_endpgm")
    return kernel_desc("k3_kernel", 160)

HDR = open('gated_mix__ssm_conv_s5__dense_activation_relu__prompt.s.ref').read().split('; Override launch')[0]
out = HDR
out += "; @launch kernel=k1_kernel grid=(384,1,1) block=(256,1,1) lds=77824\n"
out += "; @launch kernel=k2_kernel grid=(576,1,1) block=(64,1,1) lds=0\n"
out += "; @launch kernel=k3_kernel grid=(160,1,1) block=(256,1,1) lds=77824\n"
out += '.amdgcn_target "amdgcn-amd-amdhsa--gfx950"\n.text\n'
d1 = gen_k1(); d2 = gen_k2(); d3 = gen_k3()
out += A.text()
out += '.section .rodata,"a"\n.p2align 6\n' + d1 + '.p2align 6\n' + d2 + '.p2align 6\n' + d3
open(sys.argv[1] if len(sys.argv) > 1 else 'gated_mix__ssm_conv_s5__dense_activation_relu__prompt.s', 'w').write(out)
```
